```python
import torch

def _softmax(x, axis=-1):
    return torch.softmax(x, dim=axis)
def _gelu(x):
    return torch.nn.functional.gelu(x, approximate="tanh")
def _silu(x):
    return torch.nn.functional.silu(x)
def _sigmoid(x):
    return torch.sigmoid(x)
def _layernorm(x, axis=-1, eps=1e-5):
    m = x.mean(dim=axis, keepdim=True)
    v = x.var(dim=axis, keepdim=True, unbiased=False)
    return (x - m) / torch.sqrt(v + eps)
def _scatter_add(tgt, idx, src, axis=0):
    return tgt.clone().index_add_(axis, idx, src)
def _segment_sum(src, seg, n):
    out = torch.zeros((n,) + src.shape[1:], dtype=src.dtype)
    return out.index_add_(0, seg, src)
def _pad(x, pw):
    flat = tuple(v for pair in reversed(pw) for v in pair)
    return torch.nn.functional.pad(x, flat)

kernel_name = 'gated_mix__mha_block__mixer_channel_mlp__prompt'

def setup_inputs():

    _w = (lambda a: (lambda t: t.to(torch.bfloat16) if t.is_floating_point() else t)(torch.as_tensor(a)))
    def _A_setup():
        B, S, D, H = 1, 2048, 512, 32
        return {
            "x": _w((lambda *s: torch.randn(*s, dtype=torch.bfloat16) * 0.05)(B, S, D)),
            "wqkv": _w((lambda *s: torch.randn(*s, dtype=torch.bfloat16) * 0.8)(D, 3 * D)),
            "wo": _w((lambda *s: torch.randn(*s, dtype=torch.bfloat16) * 0.1)(D, D)),
        }
    _A_in = _A_setup()

    def _B_setup():
        B, S, D, F = 1, 2048, 512, 1792
        return {
            "x": _w((lambda *s: torch.randn(*s, dtype=torch.bfloat16) * 0.05)(B, S, D)),
            "w1": _w((lambda *s: torch.randn(*s, dtype=torch.bfloat16) * 1.6)(D, F) * (D ** -0.5)),
            "b1": _w((lambda *s: torch.randn(*s, dtype=torch.bfloat16) * 0.8)(F)),
            "w2": _w((lambda *s: torch.randn(*s, dtype=torch.bfloat16) * 0.05)(F, D) * (F ** -0.5)),
            "b2": _w((lambda *s: torch.randn(*s, dtype=torch.bfloat16) * 0.05)(D)),
        }
    _B_in = _B_setup()

    return {
        "A_x": _A_in["x"],
        "A_wqkv": _A_in["wqkv"],
        "A_wo": _A_in["wo"],
        "B_x": _B_in["x"],
        "B_w1": _B_in["w1"],
        "B_b1": _B_in["b1"],
        "B_w2": _B_in["w2"],
        "B_b2": _B_in["b2"],
        "gate_w": _w((lambda *s: torch.randn(*s, dtype=torch.bfloat16) * 0.05)(512) * 16.0),
    }

def reference(A_x, A_wqkv, A_wo, B_x, B_w1, B_b1, B_w2, B_b2, gate_w):
    def _A_ref(x, wqkv, wo):
        B, S, D = x.shape
        H = 32
        Dh = D // H
        qkv = (lambda x, *d: x.permute(*d))((x @ wqkv).reshape(B, S, 3, H, Dh), 2, 0, 3, 1, 4)
        q, k, v = qkv[0], qkv[1], qkv[2]
        scores = torch.einsum("bhqd,bhkd->bhqk", q, k) * (Dh ** -0.5)
        p = _softmax(scores, axis=-1)
        o = torch.einsum("bhqk,bhkd->bhqd", p, v)
        return (lambda x, *d: x.permute(*d))(o, 0, 2, 1, 3).reshape(B, S, D) @ wo

    def _B_ref(x, w1, b1, w2, b2):
        y = _layernorm(x, axis=-1)
        h = _gelu(torch.einsum("bsd,df->bsf", y, w1) + b1)
        return torch.einsum("bsf,fd->bsd", h, w2) + b2

    x = A_x
    g = _sigmoid((x * gate_w).sum(-1, keepdims=True))
    a = _A_ref(x, A_wqkv, A_wo)
    b = _B_ref(x, B_w1, B_b1, B_w2, B_b2)
    return g * a + (1 - g) * b
```

```python
import re
TRANS = ("v_exp_f32","v_log_f32","v_rcp_f32","v_rsq_f32","v_sqrt_f32","v_sin_f32","v_cos_f32")
def regs_of(tok):
    tok = tok.strip()
    tok = re.sub(r"^-", "", tok); tok = tok.replace("abs(", "").replace(")", "").replace("|", "")
    m = re.fullmatch(r"([vsa])\[(\d+):(\d+)\]", tok)
    if m: return [f"{m.group(1)}{i}" for i in range(int(m.group(2)), int(m.group(3))+1)]
    if re.fullmatch(r"[vsa]\d+", tok): return [tok]
    if tok == "vcc": return ["vcc"]
    if tok in ("m0",): return ["m0"]
    if tok == "exec": return ["exec"]
    return []
class I:
    def __init__(s, text, ln):
        s.text = text; s.ln = ln
        t = text.split(";")[0].strip()
        p = t.split(None, 1)
        s.op = p[0]; rest = p[1] if len(p) > 1 else ""
        ops = [o.strip() for o in rest.split(",")] if rest else []
        ops2 = []
        for o in ops:
            ops2.append(o.split()[0] if o.split() else o)
        s.mods = rest
        op = s.op
        s.cls = "salu"; s.dst = []; s.src = []; s.ws = 1; s.passes = 0; s.srcC = []; s.srcAB = []
        R = [regs_of(o) for o in ops2]
        if op == "s_nop": s.ws = int(ops2[0]) + 1
        if op.startswith("v_mfma") or op.startswith("v_smfmac"):
            s.cls = "mfma"; s.passes = 4 if "16x16" in op else 8
            s.dst = R[0]
            if op.startswith("v_smfmac"):
                s.srcC = R[0]; s.srcAB = R[1] + R[2] + R[3]
            else:
                s.srcC = R[3]; s.srcAB = R[1] + R[2]
            s.src = s.srcC + s.srcAB
        elif op.startswith("v_"):
            s.cls = "valu"
            s.dst = R[0]; s.src = [r for x in R[1:] for r in x]
            if op.startswith(("v_fmac","v_dot2c")): s.src += R[0]
            if op.startswith("v_permlane"): s.dst = R[0] + R[1]; s.src = R[0] + R[1]
            if op.startswith("v_cndmask") and len(R) == 3: s.src += ["vcc"]
            if op.startswith(("v_add_co","v_sub_co","v_addc_co")): s.dst = R[0] + R[1]; s.src = [r for x in R[2:] for r in x]
        elif op.startswith("ds_"):
            s.cls = "ds"
            if op.startswith("ds_read") or "_rtn" in op: s.dst = R[0]; s.src = [r for x in R[1:] for r in x]
            else: s.src = [r for x in R for r in x]
        elif op.startswith("buffer_"):
            s.cls = "vmem"
            if " lds" in (" " + rest): s.src = [r for x in R for r in x] + ["m0"]; s.lds = True
            elif op.startswith("buffer_load"): s.dst = R[0]; s.src = [r for x in R[1:] for r in x]
            else: s.src = [r for x in R for r in x]; s.data = R[0]
        else:
            if op.startswith(("s_cmp","s_cbranch","s_branch","s_waitcnt","s_barrier","s_setprio","s_sleep","s_endpgm","s_setpc")):
                s.src = [r for x in R for r in x]
            else:
                s.dst = R[0] if R else []; s.src = [r for x in R[1:] for r in x]
        s.trans = op.split("_e")[0] in TRANS
        s.dot = op.startswith("v_dot")
def need(p, c):
    n = 0; why = ""
    def up(v, w):
        nonlocal n, why
        if v > n: n, why = v, w
    pd = set(p.dst); cs = set(c.src); cd = set(c.dst)
    vd = {r for r in pd if r[0] == "v" and r != "vcc"}
    sd = {r for r in pd if r[0] == "s" or r == "vcc"}
    if p.cls == "valu":
        if c.cls == "mfma" and vd & cs: up(2, "valu->mfma")
        if p.trans and c.cls == "valu" and not c.trans and vd & cs: up(1, "trans->valu")
        if p.trans and c.cls == "valu" and c.trans and vd & cs: up(1, "trans->trans(pad)")
        if p.dot and c.cls in ("valu","ds","vmem","mfma") and vd & (cs | cd):
            if not (c.dot and c.op == p.op and vd & cd and not (vd & (cs - cd))): up(3, "dot->other")
        if c.op.startswith("v_permlane") and vd & cs: up(2, "valu->permlane")
        if c.op.startswith(("v_readfirstlane","v_readlane")) and vd & cs: up(1, "valu->readlane")
        if c.cls == "valu" and ("row_" in c.mods or "quad_perm" in c.mods) and vd & cs: up(2, "valu->dpp")
        if c.cls == "vmem" and sd & cs: up(5, "valu sgpr->vmem")
        if c.cls in ("valu","mfma") and sd & cs: up(2, "valu sgpr->valu")
        if c.cls == "salu" and sd & cs and not c.op.startswith("s_cbranch"): up(1, "valu sgpr->salu(pad)")
    if p.cls == "mfma":
        big = p.passes == 8
        if c.cls in ("valu","ds","vmem") and vd & (cs | cd): up(12 if big else 8, "mfma->valu/mem")
        if c.cls == "mfma":
            if vd & set(c.srcAB): up(12 if big else 8, "mfma->mfma AB")
            if vd & set(c.srcC) and not (p.dst == c.srcC and p.passes == c.passes): up(10 if big else 6, "mfma->mfma C overlap")
            if vd & cd and not (vd & set(c.srcC)) and p.passes != c.passes: up(10, "mfma waw diff")
        if c.cls == "valu" and set(p.srcC) & cd: up(7 if big else 3, "mfma srcC war")
    if p.cls == "salu" and "m0" in pd and c.cls == "vmem" and getattr(c, "lds", False): up(1, "m0->dma")
    if p.cls == "vmem" and hasattr(p, "data") and len(p.data) >= 3 and set(p.data) & cd and c.cls in ("valu","ds","vmem","mfma"):
        up(2 if c.cls in ("valu","mfma") else 1, "store data war")
    return n, why
def check_seq(seq, errs, start_only=None):
    for i, c in enumerate(seq):
        if start_only is not None and i < start_only: continue
        dist = 0
        for j in range(i-1, max(-1, i-24), -1):
            p = seq[j]
            if start_only is not None and j >= start_only:
                dist += p.ws; continue
            n, why = need(p, c)
            if n > dist: errs.add((p.ln, c.ln, why, n, dist, p.text.strip(), c.text.strip()))
            dist += p.ws
            if dist >= 13: break
def check(lines):
    ins = []; labels = {}
    for ln, l in enumerate(lines, 1):
        t = l.split(";")[0].strip()
        if not t or t.startswith("."): continue
        if t.endswith(":"): labels[t[:-1]] = len(ins); continue
        ins.append(I(l, ln))
    errs = set()
    seg = []
    for x in ins:
        seg.append(x)
        if x.op in ("s_branch","s_endpgm","s_setpc_b64","s_call_b64"):
            check_seq(seg, errs); seg = []
    check_seq(seg, errs)
    def path_before(i):
        out = []
        j = i
        while j >= 0 and len(out) < 24:
            out.append(ins[j]); j -= 1
            if j >= 0 and ins[j].op in ("s_branch","s_endpgm","s_setpc_b64"): break
        return out[::-1]
    rets = {}
    for i, x in enumerate(ins):
        if x.op == "s_setpc_b64":
            m = re.search(r"@ret\s+(\w+)", x.text); rets.setdefault(m.group(1), []).append(i)
    for i, x in enumerate(ins):
        tgt = None
        if x.op.startswith("s_cbranch") or x.op == "s_branch": tgt = x.text.split(";")[0].split()[1]
        if x.op == "s_call_b64": tgt = x.text.split(";")[0].split(",")[1].strip()
        if tgt:
            pre = path_before(i); b = labels[tgt]
            check_seq(pre + ins[b:b+24], errs, start_only=len(pre))
            if x.op == "s_call_b64":
                for r in rets.get(tgt, []):
                    pre = path_before(r)
                    check_seq(pre + ins[i+1:i+25], errs, start_only=len(pre))
    return sorted(errs)
```

```python
import sys, math, struct
import hazard
NAME = "gated_mix__mha_block__mixer_channel_mlp__prompt"
KN = NAME + "_kernel"

OPT = dict(prof=0, stop=0, codepf=0, sc="sc1")
for a in sys.argv[2:]:
    k, v = a.split("="); OPT[k] = int(v) if v.lstrip("-").isdigit() else v
SC = OPT["sc"]

L = []
def e(s):
    for x in s.strip("\n").split("\n"): L.append(x)
def lab(n): L.append(n + ":")
def vr(a, n=1): return f"v{a}" if n == 1 else f"v[{a}:{a+n-1}]"
def sr(a, n=1): return f"s{a}" if n == 1 else f"s[{a}:{a+n-1}]"
def f2u(x): return struct.unpack("<I", struct.pack("<f", x))[0]
def hx(x): return f"0x{x & 0xffffffff:x}"

SLOTS = [0, 28672, 57344, 86016, 114688]
SLOT = [SLOTS[i] for i in (0, 1, 2, 3, 4, 0, 1, 2)]
P1, P2, RING, ONES = 86016, 0, 65536, 151552
TBL, CS, B1T, B2T, STAT, EPO = 155648, 157696, 158208, 158720, 158976, 160000
R0, R1 = P1, P2
LDS_SIZE = 163840
MB = 1 << 20
WS_Q, WS_K, WS_V, WS_H, WS_O, WS_G = 0, 2*MB, 4*MB, 8*MB, 16*MB, 18*MB
WS_F1, WS_F2, WS_F3, WS_EP, WS_PROF, WS_SIZE = 19*MB, 19*MB + 65536, 19*MB + 131072, 19*MB + 262144, 20*MB, 24*MB
sB, sW8, sW, sTT, sCG, sROT = 2, 3, 4, 5, 6, 7
dX, dWQ, dW1, dW2, dWO, dWS, dOUT, dTMP = 8, 12, 16, 20, 24, 28, 32, 36
kX, kWQ, kWO, kW1, kB1, kW2, kB2, kGW, kOUT, kDBG, kWS = 40, 42, 44, 48, 50, 52, 54, 56, 58, 60, 62
sEP = 64
t0, t1, t2, t3, t4, t5 = 65, 66, 67, 68, 69, 70
sRET = 72
sXb, sWb, sLx, sLw = 74, 75, 76, 77
sC1, sC2, sFG, sFA = 78, 79, 80, 81
sHD, sQB, sT64, sCT = 82, 83, 84, 85
sI, sBARI, sINC, sPASS, sTO = 86, 87, 88, 89, 46
sP0, sP1, sP2 = 47, 74, 75
STAMP0 = 90
nstamp = [0]
def stamp(role):
    if not OPT["prof"]: return
    i = nstamp_role.setdefault(role, 0)
    assert i < 11, role
    e(f"s_memtime s[{t5}:{t5+1}]\ns_waitcnt lgkmcnt(0)\ns_mov_b32 s{STAMP0+i}, s{t5}")
    nstamp_role[role] = i + 1
nstamp_role = {}
def dump_stamps(role):
    if not OPT["prof"]: return
    n = nstamp_role.get(role, 0)
    e(f"s_memrealtime s[{t5}:{t5+1}]\ns_waitcnt lgkmcnt(0)\ns_mov_b32 s101, s{t5}")
    for i in range(12): e(f"v_mov_b32 v{2+i}, s{STAMP0+i}")
    e(f"""
s_lshl_b32 s{t0}, s{sB}, 3
s_add_u32 s{t0}, s{t0}, s{sW8}
s_lshl_b32 s{t0}, s{t0}, 6
s_add_u32 s{t0}, s{t0}, {WS_PROF}
v_mov_b32 v1, 0
buffer_store_dwordx4 v[2:5], v1, {sr(dWS,4)}, s{t0} offen
buffer_store_dwordx4 v[6:9], v1, {sr(dWS,4)}, s{t0} offen offset:16
buffer_store_dwordx4 v[10:13], v1, {sr(dWS,4)}, s{t0} offen offset:32
""")
def srd(d, k, size):
    e(f"s_mov_b32 s{d}, s{k}\ns_and_b32 s{d+1}, s{k+1}, 0xffff\ns_mov_b32 s{d+2}, {hx(size)}\ns_mov_b32 s{d+3}, 0x20000")
def bar(): e("s_barrier")

vLane = 0
vXa = 4
vTr = 8
vTile = 11
vRstd, vAm = 12, 13
vL16, vLV = 14, 15
ACC = 16
WF = 64
vT, vC1, vTrW1, vCsA = 100, 101, 102, 103
PK = 104
vX0, vW, vW1, vTb, vPoll, vG0, vG1 = 112, 116, 117, 118, 119, 108, 109
vGa, vGb = 1, 2
vQ = 120
XR = 128
SX, SY, OA, OB, CA, CB, KB, VB, vIDX, vK, vV, vMask = 128, 144, 160, 176, 192, 208, 224, 232, 248, 249, 250, 251
LOG2E = 1.4426950408889634
QSCALE = 0.25 * LOG2E
GC1 = -2.0 * math.sqrt(2.0 / math.pi) * LOG2E
GC2 = GC1 * 0.044715

def poll(name, vaddr, first_issued=False):
    e(f"s_mov_b32 s{sTO}, 100000")
    if not first_issued:
        e(f"buffer_load_dword v{vPoll}, v{vaddr}, {sr(dWS,4)}, 0 offen sc1")
    lab(name)
    e(f"""
s_waitcnt vmcnt(0)
v_cmp_ne_u32 vcc, s{sEP}, v{vPoll}
s_cbranch_vccz {name}_ok
s_sub_u32 s{sTO}, s{sTO}, 1
s_cbranch_scc1 {name}_ok
buffer_load_dword v{vPoll}, v{vaddr}, {sr(dWS,4)}, 0 offen sc1
s_branch {name}
""")
    lab(name + "_ok")

def x_addr_calc():
    e(f"""
v_and_b32 v1, 31, v{vLane}
v_lshrrev_b32 v2, 5, v{vLane}
v_bfe_u32 v3, v{vLane}, 1, 3
v_xor_b32 v2, v2, v3
v_lshlrev_b32 v2, 4, v2
v_lshl_add_u32 v2, v1, 7, v2
s_lshl_b32 s{t0}, s{sW}, 12
v_add_u32 v{vXa}, s{t0}, v2
v_xor_b32 v{vXa+1}, 32, v{vXa}
v_xor_b32 v{vXa+2}, 64, v{vXa}
v_xor_b32 v{vXa+3}, 0x60, v{vXa}
""")
def x_base(u):
    hi = lambda uu: 65536 if SLOT[uu] >= 65536 else 0
    d = hi(u) - (hi(u-1) if u else 0)
    return d, SLOT[u] - hi(u)
def tr_addr(u):
    s = SLOT[u]
    if s < 57344: return vTr, s
    if s < 114688: return vTr + 1, s - 57344
    return vTr + 2, s - 114688

def pair_cols():
    e(f"""
s_lshr_b32 s{t0}, s{sCG}, 2
s_mul_i32 s{t0}, s{t0}, 14
s_and_b32 s{t1}, s{sCG}, 3
s_lshl_b32 s{t2}, s{t1}, 3
s_lshr_b32 s{t3}, 0x0a080400, s{t2}
s_and_b32 s{t3}, s{t3}, 0xff
s_add_u32 s{sC1}, s{t0}, s{t3}
s_lshr_b32 s{t3}, 0x0c060602, s{t2}
s_and_b32 s{t3}, s{t3}, 0xff
s_add_u32 s{sC2}, s{t0}, s{t3}
s_cmp_lg_u32 s{t1}, 2
s_cselect_b32 s{sFG}, 1, 0
s_cmp_lg_u32 s{t1}, 1
s_cselect_b32 s{sFA}, 1, 0
""")

def trw1_calc():
    e(f"""
v_lshrrev_b32 v1, 5, v{vLane}
v_lshlrev_b32 v1, 9, v1
v_bfe_u32 v2, v{vLane}, 2, 2
v_lshl_add_u32 v1, v2, 6, v1
v_bfe_u32 v2, v{vLane}, 4, 1
v_lshl_add_u32 v1, v2, 5, v1
v_and_b32 v2, 1, v{vLane}
v_lshl_add_u32 v3, v2, 4, v1
v_bfe_u32 v2, v{vLane}, 1, 1
v_lshl_add_u32 v{vTrW1}, v2, 3, v3
v_lshrrev_b32 v2, 5, v{vLane}
v_lshlrev_b32 v2, 5, v2
v_add_u32 v{vT}, {CS}, v2
v_mov_b32 v{vC1}, {hx(f2u(GC1))}
v_lshlrev_b32 v{vL16}, 4, v{vLane}
""")

e(f"""; fused gated mix: MHA block + channel MLP, one persistent launch of 256 workgroups
; @launch grid=(256,1,1) block=(512,1,1) lds={LDS_SIZE}
.amdgcn_target "amdgcn-amd-amdhsa--gfx950"
.text
.globl {KN}
.p2align 8
.type {KN},@function""")
lab(KN)
e(f"""
s_cmp_ge_u32 s{sB}, 256
s_cbranch_scc1 L_END
s_load_dwordx8 s[40:47], s[0:1], 0
s_load_dwordx8 s[48:55], s[0:1], 32
s_load_dwordx8 s[56:63], s[0:1], 64
v_lshrrev_b32 v1, 6, v0
v_and_b32 v0, 63, v0
s_and_b32 s{t0}, s{sB}, 7
v_readfirstlane_b32 s{sW8}, v1
s_lshr_b32 s{t1}, s{sB}, 3
s_and_b32 s{t2}, s{t0}, 1
s_lshl_b32 s{t2}, s{t2}, 3
s_and_b32 s{sQB}, s{t1}, 7
s_add_u32 s{sTT}, s{t2}, s{sQB}
s_lshr_b32 s{t2}, s{t0}, 1
s_lshl_b32 s{t2}, s{t2}, 2
s_lshr_b32 s{t3}, s{t1}, 3
s_add_u32 s{sCG}, s{t2}, s{t3}
s_lshl_b32 s{t2}, s{t3}, 1
s_add_u32 s{sROT}, s{sTT}, s{t2}
s_and_b32 s{sROT}, s{sROT}, 7
s_lshl_b32 s{t0}, s{t0}, 2
s_add_u32 s{sHD}, s{t0}, s{t3}
s_mov_b32 s{sT64}, s{sHD}
s_mov_b32 s{sCT}, s{sQB}
s_and_b32 s{sW}, s{sW8}, 3
s_cmp_ge_u32 s{sW8}, 4
s_cbranch_scc0 L_G
""")
e(f"""
v_lshrrev_b32 v1, 3, v0
v_lshrrev_b32 v2, 4, v0
v_xor_b32 v2, v2, v0
v_and_b32 v2, 7, v2
v_lshlrev_b32 v2, 4, v2
v_lshl_add_u32 v{vX0}, v1, 10, v2
v_xor_b32 v3, 64, v{vX0}
v_add_u32 v{vX0+1}, 7168, v3
v_add_u32 v{vX0+2}, 14336, v{vX0}
v_add_u32 v{vX0+3}, 21504, v3
v_lshrrev_b32 v1, 2, v0
v_and_b32 v2, 3, v0
v_lshlrev_b32 v2, 4, v2
v_mul_u32_u24 v3, 3072, v1
v_add_u32 v{vW}, v3, v2
v_mul_u32_u24 v3, 3584, v1
v_add_u32 v{vW1}, v3, v2
s_lshl_b32 s{sXb}, s{sTT}, 17
s_lshl_b32 s{t0}, s{sW}, 15
s_add_u32 s{sXb}, s{sXb}, s{t0}
s_mul_i32 s{sWb}, s{sW}, 49152
s_mul_i32 s{t0}, s{sCG}, 192
s_add_u32 s{sWb}, s{sWb}, s{t0}
s_lshl_b32 s{sLx}, s{sW}, 12
s_mul_i32 s{sLw}, s{sW}, 3072
s_add_u32 s{sLw}, s{sLw}, 16384
s_waitcnt lgkmcnt(0)
""")
srd(dX, kX, 2048*1024); srd(dWQ, kWQ, 512*3072)
def dma_unit(u):
    e(f"""
s_add_u32 s{t0}, s{sROT}, {u}
s_and_b32 s{t0}, s{t0}, 7
s_lshl_b32 s{t1}, s{t0}, 7
s_add_u32 s{t1}, s{t1}, s{sXb}
s_add_u32 m0, s{sLx}, {SLOT[u]}
s_mul_i32 s{t2}, s{t0}, 196608
""")
    for j in range(4):
        e(f"buffer_load_dwordx4 v{vX0+j}, {sr(dX,4)}, s{t1} offen offset:{1024*j} lds")
    e(f"""
s_add_u32 m0, s{sLw}, {SLOT[u]}
s_add_u32 s{t2}, s{t2}, s{sWb}
buffer_load_dwordx4 v{vW}, {sr(dWQ,4)}, s{t2} offen lds
s_add_u32 m0, m0, 960
s_nop 0
buffer_load_dwordx4 v{vW}, {sr(dWQ,4)}, s{t2} offen offset:64 lds
s_add_u32 m0, m0, 960
s_nop 0
buffer_load_dwordx4 v{vW}, {sr(dWQ,4)}, s{t2} offen offset:128 lds
""")
for u in range(5): dma_unit(u)
stamp("A")
srd(dW1, kW1, 512*3584); srd(dWS, kWS, WS_SIZE)
x_addr_calc()
e(f"""
v_and_b32 v1, 15, v0
v_lshrrev_b32 v2, 4, v0
v_xor_b32 v3, v1, v2
v_and_b32 v3, 1, v3
v_lshrrev_b32 v16, 2, v1
v_or_b32 v3, v3, v16
v_lshrrev_b32 v16, 1, v2
v_cmp_gt_u32 vcc, 2, v1
v_mov_b32 v17, 2
s_nop 0
v_cndmask_b32 v16, v16, v17, vcc
v_cmp_eq_u32 vcc, 0, v3
v_mov_b32 v17, 3
s_nop 0
v_cndmask_b32 v16, v17, v16, vcc
v_lshlrev_b32 v16, 4, v16
v_add_u32 v{vTb}, {TBL}, v16
""")
for i in range(48, 56): e(f"v_mov_b32 v{i}, 0")
trw1_calc()
pair_cols()
e("s_waitcnt vmcnt(28)")
bar()
stamp("A")
VM = {1: 21, 2: 21, 3: 21, 4: 21, 5: 14, 6: 23, 7: 16}
for u in range(8):
    d, imm = x_base(u)
    if d:
        for s in range(4): e(f"v_add_u32 v{vXa+s}, {hx(d)}, v{vXa+s}")
    for s in range(4):
        e(f"ds_read_b128 {vr(XR+4*(4*u+s),4)}, v{vXa+s} offset:{imm}")
        e(f"ds_read_b128 {vr(32+4*s,4)}, v{vTb} offset:{64*(4*u+s)}")
    if 1 <= u <= 3: dma_unit(u + 4)
    if u == 5:
        e(f"s_mov_b32 s{sP0}, {P1}\ns_lshl_b32 s{sP1}, s{sC1}, 6\ns_call_b64 {sr(sRET,2)}, L_DMAPAIR")
    e("s_waitcnt lgkmcnt(0)")
    if u == 7: bar()
    for s in range(4):
        x = XR + 4*(4*u + s)
        e(f"v_mfma_f32_16x16x32_bf16 v[48:51], {vr(32+4*s,4)}, {vr(x,4)}, v[48:51]")
    for s in range(4):
        x = XR + 4*(4*u + s)
        for j in range(4): e(f"v_dot2c_f32_bf16 v{52+j}, v{x+j}, v{x+j}")
    if u < 7:
        e(f"s_waitcnt vmcnt({VM[u+1]})")
        bar()
stamp("A")
e(f"""
v_mov_b32 v1, {EPO}
ds_read_b32 v3, v1
s_nop 1
v_add_f32 v52, v52, v53
v_add_f32 v54, v54, v55
v_add_f32 v52, v52, v54
v_mov_b32 v53, v52
v_permlane16_swap_b32 v48, v49
v_permlane16_swap_b32 v50, v51
v_permlane32_swap_b32 v52, v53
v_mov_b32 v49, v48
v_mov_b32 v51, v50
v_add_f32 v52, v52, v53
v_permlane32_swap_b32 v48, v49
v_permlane32_swap_b32 v50, v51
v_mul_f32 v52, {hx(f2u(1/512))}, v52
v_mul_f32 v48, {hx(f2u(1/512))}, v48
v_mul_f32 v50, {hx(f2u(-LOG2E))}, v50
v_fma_f32 v52, -v48, v48, v52
v_exp_f32 v50, v50
v_max_f32 v52, 0, v52
v_add_f32 v52, {hx(f2u(1e-5))}, v52
v_add_f32 v50, 1.0, v50
v_rsq_f32 v{vRstd}, v52
v_rcp_f32 v50, v50
v_and_b32 v1, 31, v0
v_mul_f32 v{vAm}, -v48, v{vRstd}
v_lshlrev_b32 v2, 3, v1
s_lshl_b32 s{t0}, s{sW}, 8
s_add_u32 s{t0}, s{t0}, {STAT}
v_add_u32 v2, s{t0}, v2
v_lshlrev_b32 v1, 2, v1
ds_write_b64 v2, v[{vRstd}:{vAm}]
s_lshl_b32 s{t0}, s{sCG}, 13
s_lshl_b32 s{t1}, s{sTT}, 9
s_add_u32 s{t0}, s{t0}, s{t1}
s_lshl_b32 s{t1}, s{sW}, 7
s_add_u32 s{t0}, s{t0}, s{t1}
s_add_u32 s{t0}, s{t0}, {WS_G}
buffer_store_dword v50, v1, {sr(dWS,4)}, s{t0} offen {SC}
s_waitcnt lgkmcnt(0)
v_readfirstlane_b32 s{sEP}, v3
s_mov_b32 s{sP0}, {P2}
s_lshl_b32 s{sP1}, s{sC2}, 6
s_call_b64 {sr(sRET,2)}, L_DMAPAIR
s_waitcnt vmcnt(16)
""")
bar()
stamp("A")
e(f"v_add_u32 v{vTile}, {P1+32768}, v{vTrW1}\ns_call_b64 {sr(sRET,2)}, L_TILE")
bar()
e(f"s_mov_b32 s{sP0}, 128\ns_call_b64 {sr(sRET,2)}, L_EPI")
e(f"""
s_lshr_b32 s{t0}, s{sHD}, 1
s_mul_i32 s{t1}, s{t0}, 0x5556
s_lshr_b32 s{sP2}, s{t1}, 16
s_add_u32 s{t1}, s{t0}, 16
s_mul_i32 s{t1}, s{t1}, 0x5556
s_lshr_b32 s{t1}, s{t1}, 16
s_add_u32 s{t2}, s{t0}, 32
s_mul_i32 s{t2}, s{t2}, 0x5556
s_lshr_b32 s{t2}, s{t2}, 16
s_lshl_b32 s{t3}, s{sQB}, 5
s_add_u32 s{t3}, s{t3}, s{sP2}
v_and_b32 v16, 15, v0
v_lshlrev_b32 v16, 4, v16
v_add_u32 v17, s{t1}, v16
v_add_u32 v18, s{t2}, v16
v_and_b32 v19, 1, v0
v_lshlrev_b32 v19, 4, v19
v_add_u32 v19, s{t3}, v19
v_cmp_gt_u32 vcc, 16, v0
s_nop 1
v_cndmask_b32 v17, v18, v17, vcc
v_cmp_gt_u32 vcc, 32, v0
s_nop 1
v_cndmask_b32 v17, v19, v17, vcc
v_lshlrev_b32 v17, 6, v17
v_add_u32 v{vTb}, {WS_F1}, v17
buffer_load_dword v{vPoll}, v{vTb}, {sr(dWS,4)}, 0 offen sc1
s_waitcnt vmcnt(1)
""")
bar()
stamp("A")
poll("L_P1", vTb, first_issued=True)
stamp("A")
e(f"""
s_lshl_b32 s{t0}, s{sHD}, 16
s_lshl_b32 s{t1}, s{sQB}, 13
s_add_u32 s{t0}, s{t0}, s{t1}
s_lshl_b32 s{t1}, s{sW}, 11
s_add_u32 s{t0}, s{t0}, s{t1}
buffer_load_dwordx4 {vr(vQ,4)}, v{vL16}, {sr(dWS,4)}, s{t0} offen {SC}
buffer_load_dwordx4 {vr(vQ+4,4)}, v{vL16}, {sr(dWS,4)}, s{t0} offen offset:1024 {SC}
s_lshl_b32 s{t0}, s{sP2}, 13
s_lshl_b32 s{t1}, s{sQB}, 10
s_add_u32 s{t0}, s{t0}, s{t1}
s_lshl_b32 s{t1}, s{sW}, 8
s_add_u32 s{t0}, s{t0}, s{t1}
s_add_u32 s{t0}, s{t0}, {WS_G}
v_and_b32 v16, 31, v0
v_lshlrev_b32 v16, 2, v16
buffer_load_dword v{vGa}, v16, {sr(dWS,4)}, s{t0} offen {SC}
buffer_load_dword v{vGb}, v16, {sr(dWS,4)}, s{t0} offen offset:128 {SC}
s_mov_b32 s{sP0}, {R0}
s_mov_b32 s{sP1}, 0
s_call_b64 {sr(sRET,2)}, L_DMAKV
""")
def h_store(sTile_expr):
    e(sTile_expr)
    e(f"""
s_lshl_b32 s{t0}, s{t0}, 11
s_lshl_b32 s{t1}, s{sTT}, 2
s_add_u32 s{t1}, s{t1}, s{sW}
s_mul_i32 s{t1}, s{t1}, 114688
s_add_u32 s{t0}, s{t0}, s{t1}
s_add_u32 s{t0}, s{t0}, {WS_H}
buffer_store_dwordx4 {vr(PK,4)}, v{vL16}, {sr(dWS,4)}, s{t0} offen {SC}
buffer_store_dwordx4 {vr(PK+4,4)}, v{vL16}, {sr(dWS,4)}, s{t0} offen offset:1024 {SC}
""")
h_store(f"s_add_u32 s{t0}, s{sC1}, 1")
e(f"""
s_cmp_eq_u32 s{sFA}, 0
s_cbranch_scc1 L_A_NOD1
v_add_u32 v{vTile}, {P2+32768}, v{vTrW1}
s_call_b64 {sr(sRET,2)}, L_TILE
""")
lab("L_A_NOD1")
bar()
e(f"""
s_cmp_eq_u32 s{sFA}, 0
s_cbranch_scc1 L_A_NOD2
s_mov_b32 s{sP0}, 384
s_call_b64 {sr(sRET,2)}, L_EPI
""")
h_store(f"s_add_u32 s{t0}, s{sC2}, 1")
lab("L_A_NOD2")
e("s_waitcnt vmcnt(2)")
bar()
stamp("A")
e(f"""
s_mov_b32 s{sP0}, {R1}
s_mov_b32 s{sP1}, 32
s_call_b64 {sr(sRET,2)}, L_DMAKV
s_mov_b32 s{sPASS}, 0
s_mov_b32 s{sBARI}, 1
v_mov_b32 v{vIDX}, 0xdddddddd
""")
if OPT["stop"] == 1:
    e("s_waitcnt vmcnt(0)"); bar(); e("s_branch L_END")
lab("L_ATT")
e(f"""
v_add_u32 v{vK}, {R0}, v{vL16}
v_lshrrev_b32 v16, 5, v0
v_lshlrev_b32 v16, 8, v16
v_bfe_u32 v17, v0, 2, 2
v_lshl_add_u32 v16, v17, 5, v16
v_and_b32 v17, 3, v0
v_lshl_add_u32 v16, v17, 3, v16
v_add_u32 v16, {R0+32768}, v16
v_and_b32 v17, 15, v0
v_lshlrev_b32 v17, 3, v17
v_add_u32 v17, {ONES+128}, v17
v_bfe_u32 v18, v0, 4, 1
v_xor_b32 v{vMask}, 1, v18
v_cmp_eq_u32 vcc, 0, v18
ds_read_b128 {vr(KB,4)}, v{vK}
ds_read_b128 {vr(KB+4,4)}, v{vK} offset:1024
v_cndmask_b32 v{vV}, v17, v16, vcc
""")
def v_reads(buf, tig):
    return [f"ds_read_b64_tr_b16 {vr(VB+8*buf+2*q,2)}, v{vV} offset:{1024*tig + 512*(q>>1) + 128*(q&1)}" for q in range(4)]
for r in v_reads(0, 0): e(r)
for i in range(16): e(f"v_mov_b32 v{OA+i}, 0")
for i in range(16): e(f"v_mov_b32 v{OB+i}, 0")
for i in range(4): e(f"v_mov_b32 v{VB+12+i}, 0")
e(f"""
s_mov_b32 s{sI}, 0
s_waitcnt lgkmcnt(0)
s_cmp_eq_u32 s{sPASS}, 0
s_cbranch_scc0 L_ATT_HAVEC
v_mfma_f32_32x32x16_bf16 {vr(SX,16)}, {vr(KB,4)}, {vr(vQ,4)}, 0
v_mfma_f32_32x32x16_bf16 {vr(SY,16)}, {vr(KB,4)}, {vr(vQ+4,4)}, 0
s_nop 10
""")
def maxtree(dst, src, init=None):
    if init is None:
        e(f"v_max3_f32 v{dst}, v{src}, v{src+1}, v{src+2}")
        k = 3
    else:
        k = 0
    while k < 16:
        if k + 1 < 16: e(f"v_max3_f32 v{dst}, v{dst}, v{src+k}, v{src+k+1}"); k += 2
        else: e(f"v_max_f32 v{dst}, v{dst}, v{src+k}"); k += 1
maxtree(16, SX); maxtree(17, SY)
lab("L_ATT_SETC")
e(f"""
v_mov_b32 v18, v16
v_mov_b32 v19, v17
s_nop 1
v_permlane32_swap_b32 v16, v18
v_permlane32_swap_b32 v17, v19
v_max_f32 v16, v16, v18
v_max_f32 v17, v17, v19
v_sub_f32 v{CA}, 0, v16
v_sub_f32 v{CB}, 0, v17
""")
for i in range(1, 16): e(f"v_mov_b32 v{CA+i}, v{CA}\nv_mov_b32 v{CB+i}, v{CB}")
e(f"s_cmp_eq_u32 s{sPASS}, 0\ns_cbranch_scc0 L_ATT")
lab("L_ATT_HAVEC")
e(f"s_nop 1\nv_mfma_f32_32x32x16_bf16 {vr(SX,16)}, {vr(KB,4)}, {vr(vQ,4)}, {vr(CA,16)}\ns_nop 11")
def half_step(cur, oth, Ocur, Ooth, Qoth, Coth, Kf, V0, V1prev, fill, wait7, wait12):
    fill = list(fill)
    def ex(i):
        e(f"v_exp_f32 v{cur+i}, v{cur+i}")
    ex(0); ex(1)
    e(f"v_smfmac_f32_32x32x32_bf16 {vr(Ooth,16)}, {vr(V1prev,4)}, {vr(oth+8,8)}, v{vIDX}")
    for i in range(2, 6):
        ex(i)
        if i == 5 and wait7: e(wait7)
        elif fill and fill[0][0] == "a": e(fill.pop(0)[1])
    e(f"v_mfma_f32_32x32x16_bf16 {vr(oth,16)}, {vr(Kf,4)}, {vr(Qoth,4)}, {vr(Coth,16)}")
    for i in range(6, 10):
        ex(i)
        if i == 9 and wait12: e(wait12)
        elif fill: e(fill.pop(0)[1])
    e(f"v_smfmac_f32_32x32x32_bf16 {vr(Ocur,16)}, {vr(V0,4)}, {vr(cur,8)}, v{vIDX}")
    for i in range(10, 16):
        ex(i)
        if fill: e(fill.pop(0)[1])
    assert not fill
e(".p2align 6")
lab("L_ATT_LOOP")
e(f"s_cmp_eq_u32 s{sI}, s{sBARI}\ns_cbranch_scc1 L_ATT_BAR")
lab("L_ATT_BARRET")
e(f"s_movk_i32 s{sINC}, 0x1000\ns_cmp_eq_u32 s{sI}, 7\ns_cmov_b32 s{sINC}, {hx(R1 - R0 - 28672)}")
for t in range(4):
    p = t & 1
    fa = [("a", r) for r in v_reads(p ^ 1, (t + 1) & 3)]
    if t == 2: fa.append(("b", f"v_mad_i32_i24 v{vV}, v{vMask}, s{sINC}, v{vV}"))
    fa.append(("b", "s_nop 0"))
    half_step(SX, SY, OA, OB, vQ+4, CB, KB + 4*p, VB + 8*p, VB + 8*(p^1) + 4, fa, None, "s_waitcnt lgkmcnt(5)")
    fb = [("b", f"ds_read_b128 {vr(KB+4*p,4)}, v{vK} offset:{1024*((t+2)&3)}")]
    if t == 1: fb.append(("b", f"v_add_u32 v{vK}, s{sINC}, v{vK}"))
    if t == 3: fb += [("b", f"s_add_u32 s{sI}, s{sI}, 1"), ("b", f"s_cmp_lt_u32 s{sI}, 16")]
    half_step(SY, SX, OB, OA, vQ, CA, KB + 4*(p^1), VB + 8*p, VB + 8*p + 4, fb, "s_waitcnt lgkmcnt(4)", None)
e("s_cbranch_scc1 L_ATT_LOOP")
e(f"s_nop 1\nv_smfmac_f32_32x32x32_bf16 {vr(OB,16)}, {vr(VB+12,4)}, {vr(SY+8,8)}, v{vIDX}")
stamp("A")
e(f"""
s_lshl_b32 s{t0}, s{sQB}, 3
s_lshl_b32 s{t1}, s{sW}, 1
s_add_u32 s{t0}, s{t0}, s{t1}
s_lshl_b32 s{t0}, s{t0}, 15
s_lshl_b32 s{t1}, s{sHD}, 10
s_add_u32 s{t0}, s{t0}, s{t1}
s_add_u32 s{t0}, s{t0}, {WS_O}
s_mov_b32 s{t1}, 0x7f000000
s_nop 3
v_add_f32 v16, abs(v{OA}), v{OA+8}
v_rcp_f32 v18, v{OA+8}
""")
for i in range(1, 8): e(f"v_add_f32 v16, abs(v{OA+i}), v16")
e(f"v_mul_f32 v18, v18, v{vGa}\nv_add_f32 v17, abs(v{OB}), v{OB+8}\nv_rcp_f32 v19, v{OB+8}")
for i in range(1, 8): e(f"v_add_f32 v17, abs(v{OB+i}), v17")
e(f"""
v_mul_f32 v19, v19, v{vGb}
v_add_f32 v16, v16, v17
v_cmp_ngt_f32 vcc, s{t1}, v16
s_cbranch_vccnz L_ATT_FB
""")
lab("L_ATT_OK")
for i in range(8): e(f"v_mul_f32 v{OA+i}, v{OA+i}, v18")
for i in range(4): e(f"v_cvt_pk_bf16_f32 v{20+i}, v{OA+2*i}, v{OA+2*i+1}")
e(f"buffer_store_dwordx4 v[20:23], v{vL16}, {sr(dWS,4)}, s{t0} offen {SC}")
for i in range(8): e(f"v_mul_f32 v{OB+i}, v{OB+i}, v19")
for i in range(4): e(f"v_cvt_pk_bf16_f32 v{24+i}, v{OB+2*i}, v{OB+2*i+1}")
e(f"""
s_add_u32 s{t0}, s{t0}, 32768
buffer_store_dwordx4 v[24:27], v{vL16}, {sr(dWS,4)}, s{t0} offen {SC}
s_lshl_b32 s{t0}, s{sQB}, 2
s_add_u32 s{t0}, s{t0}, s{sW}
s_lshl_b32 s{t0}, s{t0}, 5
s_add_u32 s{t0}, s{t0}, s{sHD}
s_lshl_b32 s{t0}, s{t0}, 6
s_add_u32 s{t0}, s{t0}, {WS_F3}
v_mov_b32 v16, s{sEP}
v_mov_b32 v17, 0
s_waitcnt vmcnt(0)
buffer_store_dword v16, v17, {sr(dWS,4)}, s{t0} offen sc1
""")
stamp("A")
dump_stamps("A")
e("s_endpgm")
lab("L_ATT_BAR")
e("s_waitcnt vmcnt(0)"); bar(); e("s_branch L_ATT_BARRET")
lab("L_ATT_FB")
e(f"""
s_cmp_eq_u32 s{sPASS}, 0
s_cbranch_scc0 L_ATT_OK
s_mov_b32 s{sPASS}, 1
s_mov_b32 s{sBARI}, -1
s_mov_b32 s{sI}, 0
v_add_u32 v{vK}, {R0}, v{vL16}
v_mov_b32 v16, 0xff800000
v_mov_b32 v17, 0xff800000
""")
lab("L_FB_LOOP")
e(f"""
ds_read_b128 {vr(KB,4)}, v{vK}
s_movk_i32 s{sINC}, 0x400
s_cmp_eq_u32 s{sI}, 31
s_cmov_b32 s{sINC}, {hx(R1 - R0 - 31744)}
s_waitcnt lgkmcnt(0)
v_mfma_f32_32x32x16_bf16 {vr(SX,16)}, {vr(KB,4)}, {vr(vQ,4)}, 0
v_mfma_f32_32x32x16_bf16 {vr(SY,16)}, {vr(KB,4)}, {vr(vQ+4,4)}, 0
v_add_u32 v{vK}, s{sINC}, v{vK}
s_nop 10
""")
maxtree(16, SX, init=True); maxtree(17, SY, init=True)
e(f"""
s_add_u32 s{sI}, s{sI}, 1
s_cmp_lt_u32 s{sI}, 64
s_cbranch_scc1 L_FB_LOOP
s_branch L_ATT_SETC
""")

lab("L_G")
x_addr_calc()
e(f"""
v_lshrrev_b32 v1, 5, v0
v_lshlrev_b32 v1, 9, v1
v_bfe_u32 v2, v0, 2, 2
v_lshl_add_u32 v1, v2, 6, v1
v_bfe_u32 v2, v0, 4, 1
v_lshl_add_u32 v1, v2, 5, v1
v_and_b32 v2, 3, v0
v_lshl_add_u32 v1, v2, 3, v1
v_add_u32 v{vTr}, 16384, v1
v_add_u32 v{vTr+1}, {16384+57344}, v1
v_add_u32 v{vTr+2}, {16384+114688}, v1
""")
trw1_calc()
pair_cols()
e(f"""
v_and_b32 v1, 31, v0
v_lshlrev_b32 v1, 5, v1
v_lshrrev_b32 v2, 5, v0
v_lshl_add_u32 v{vLV}, v2, 4, v1
v_and_b32 v1, 19, v0
v_bfe_u32 v2, v0, 2, 1
v_lshl_or_b32 v1, v2, 3, v1
v_bfe_u32 v2, v0, 3, 1
v_lshl_or_b32 v1, v2, 2, v1
v_lshlrev_b32 v1, 2, v1
v_add_u32 v{vCsA}, {CS}, v1
s_waitcnt lgkmcnt(0)
""")
srd(dWS, kWS, WS_SIZE)
e(f"""
s_cmp_eq_u32 s{sW}, 1
s_cbranch_scc1 L_G_T1
s_cmp_eq_u32 s{sW}, 2
s_cbranch_scc1 L_G_T2
s_cmp_eq_u32 s{sW}, 3
s_cbranch_scc1 L_G_T3
""")
srd(dTMP, kGW, 1024)
e(f"""
buffer_load_dwordx4 v[16:19], v{vL16}, {sr(dTMP,4)}, 0 offen
v_lshrrev_b32 v1, 1, v0
s_lshl_b32 s{t0}, s{sROT}, 2
v_subrev_u32 v1, s{t0}, v1
v_and_b32 v1, 31, v1
v_lshlrev_b32 v1, 6, v1
v_and_b32 v2, 1, v0
v_lshl_add_u32 v1, v2, 4, v1
v_add_u32 v1, {TBL}, v1
v_and_b32 v2, 31, v0
v_lshlrev_b32 v2, 6, v2
v_lshrrev_b32 v3, 5, v0
v_lshl_add_u32 v2, v3, 4, v2
v_add_u32 v2, {TBL+32}, v2
v_subrev_u32 v3, 1, v3
v_and_b32 v20, 0x3f803f80, v3
v_mov_b32 v21, v20
v_mov_b32 v22, v20
v_mov_b32 v23, v20
ds_write_b128 v2, v[20:23]
s_cmp_eq_u32 s{sB}, 0
s_cbranch_scc0 L_G_T0B
v_mov_b32 v24, {WS_EP}
buffer_load_dword v25, v24, {sr(dWS,4)}, 0 offen sc1
s_waitcnt vmcnt(0)
ds_write_b128 v1, v[16:19]
v_add_u32 v25, 1, v25
v_max_u32 v25, 1, v25
""")
srd(dTMP, kDBG, 256)
e(f"""
v_mov_b32 v26, 0
buffer_store_dword v25, v26, {sr(dTMP,4)}, 0 offen sc1
buffer_store_dword v25, v24, {sr(dWS,4)}, 0 offen sc1
s_branch L_G_TDONE
""")
lab("L_G_T0B")
e("s_waitcnt vmcnt(0)\nds_write_b128 v1, v[16:19]\ns_branch L_G_TDONE")
lab("L_G_T1")
srd(dTMP, kB1, 3584)
e(f"""
v_and_b32 v1, 31, v0
v_lshlrev_b32 v1, 2, v1
s_lshl_b32 s{t0}, s{sC1}, 6
s_lshl_b32 s{t1}, s{sC2}, 6
v_add_u32 v2, s{t0}, v1
v_add_u32 v3, s{t1}, v1
v_cmp_gt_u32 vcc, 32, v0
v_lshlrev_b32 v1, 3, v0
v_mov_b32 v18, 0
v_cndmask_b32 v2, v3, v2, vcc
buffer_load_dword v16, v2, {sr(dTMP,4)}, 0 offen
v_mov_b32 v19, 0
v_add_u32 v1, {CS}, v1
ds_write_b64 v1, v[18:19]
s_waitcnt vmcnt(0)
v_and_b32 v17, 0xffff0000, v16
v_lshlrev_b32 v16, 16, v16
ds_write_b64 v1, v[16:17] offset:{B1T-CS}
s_branch L_G_TDONE
""")
lab("L_G_T2")
srd(dTMP, kB2, 1024)
e(f"""
v_and_b32 v1, 31, v0
v_lshlrev_b32 v2, 2, v1
s_lshl_b32 s{t0}, s{sCT}, 7
buffer_load_dword v16, v2, {sr(dTMP,4)}, s{t0} offen
v_lshlrev_b32 v1, 3, v1
v_add_u32 v1, {B2T}, v1
s_waitcnt vmcnt(0)
v_and_b32 v17, 0xffff0000, v16
v_lshlrev_b32 v16, 16, v16
ds_write_b64 v1, v[16:17]
s_branch L_G_TDONE
""")
lab("L_G_T3")
if OPT["codepf"]:
    e(f"""
s_getpc_b64 s[{dTMP}:{dTMP+1}]
s_and_b32 s{dTMP}, s{dTMP}, 0xffffff00
s_and_b32 s{dTMP+1}, s{dTMP+1}, 0xffff
s_mov_b32 s{dTMP+2}, CODE_SPAN
s_mov_b32 s{dTMP+3}, 0x20000
s_lshr_b32 s{t0}, s{sB}, 3
s_lshl_b32 s{t0}, s{t0}, 10
buffer_load_dwordx4 v[24:27], v{vL16}, {sr(dTMP,4)}, s{t0} offen
""")
e(f"""
v_add_u32 v1, {ONES}, v{vL16}
v_mov_b32 v16, 0x3f803f80
v_mov_b32 v17, v16
v_mov_b32 v18, v16
v_mov_b32 v19, v16
""")
for j in range(4): e(f"ds_write_b128 v1, v[16:19] offset:{1024*j}")
lab("L_G_TDONE")
srd(dTMP, kDBG, 256)
srd(dW2, kW2, 1792*1024); srd(dWO, kWO, 512*1024); srd(dOUT, kOUT, 2048*1024)
e("s_waitcnt lgkmcnt(0)")
bar()
stamp("G")
def g_reads(sg):
    u, s = sg >> 2, sg & 3
    a, base = tr_addr(u)
    out = []
    for i in range(3):
        for q in range(2):
            out.append(f"ds_read_b64_tr_b16 {vr(WF+12*(sg%3)+4*i+2*q,2)}, v{a} offset:{base + s*3072 + i*1024 + q*256}")
    out.append(f"ds_read_b128 {vr(XR+4*sg,4)}, v{vXa+s} offset:{x_base(u)[1]}")
    return out
for r in g_reads(0) + g_reads(1): e(r)
for sg in range(32):
    nx = sg + 2
    if nx % 4 == 0:
        if sg == 26:
            e(f"s_waitcnt vmcnt(0)\nv_readfirstlane_b32 s{sEP}, v{vPoll}\ns_nop 0\ns_cmp_eq_u32 s{sEP}, 0\ns_cbranch_scc1 L_G_EPSPIN")
            lab("L_G_EPOK")
            e(f"v_mov_b32 v1, {EPO}\nds_write_b32 v1, v{vPoll}")
        e("s_waitcnt lgkmcnt(0)"); bar()
        if nx < 32:
            d, _ = x_base(nx >> 2)
            if d:
                for s in range(4): e(f"v_add_u32 v{vXa+s}, {hx(d)}, v{vXa+s}")
    else:
        e(f"s_waitcnt lgkmcnt({7 if sg < 31 else 0})")
    if sg == 13:
        e(f"s_nop 0\nv_mov_b32 v1, 0\nbuffer_load_dword v{vPoll}, v1, {sr(dTMP,4)}, 0 offen sc1")
    rd = g_reads(nx) if nx < 32 else []
    for i in range(3):
        c = vr(ACC+16*i, 16) if sg else "0"
        e(f"v_mfma_f32_32x32x16_bf16 {vr(ACC+16*i,16)}, {vr(WF+12*(sg%3)+4*i,4)}, {vr(XR+4*sg,4)}, {c}")
        for r in rd[(0,3,5)[i]:(3,5,7)[i]]: e(r)
stamp("G")
for i in range(3):
    e(f"""
s_mul_i32 s{t0}, s{sCG}, 3
s_add_u32 s{t0}, s{t0}, {i}
s_lshr_b32 s{t1}, s{t0}, 4
s_and_b32 s{t0}, s{t0}, 15
s_lshl_b32 s{t0}, s{t0}, 17
s_lshl_b32 s{t2}, s{t1}, 21
s_add_u32 s{t0}, s{t0}, s{t2}
s_lshl_b32 s{t2}, s{sTT}, 2
s_add_u32 s{t2}, s{t2}, s{sW}
s_lshl_b32 s{t2}, s{t2}, 10
s_add_u32 s{t0}, s{t0}, s{t2}
s_add_u32 s{t2}, s{t0}, 65536
s_cmp_eq_u32 s{t1}, 2
s_cselect_b64 s[{t5}:{t5+1}], -1, 0
v_cndmask_b32 v{1+i}, v{vL16}, v{vLV}, s[{t5}:{t5+1}]
s_cmp_eq_u32 s{t1}, 0
s_cbranch_scc0 L_G_NOS{i}
s_mov_b32 s{t1}, {hx(f2u(QSCALE))}
""")
    for j in range(16): e(f"v_mul_f32 v{ACC+16*i+j}, s{t1}, v{ACC+16*i+j}")
    lab(f"L_G_NOS{i}")
    for j in range(8): e(f"v_cvt_pk_bf16_f32 v{WF+8*i+j}, v{ACC+16*i+2*j}, v{ACC+16*i+2*j+1}")
    e(f"buffer_store_dwordx4 {vr(WF+8*i,4)}, v{1+i}, {sr(dWS,4)}, s{t0} offen {SC}")
    e(f"buffer_store_dwordx4 {vr(WF+8*i+4,4)}, v{1+i}, {sr(dWS,4)}, s{t2} offen {SC}")
bar()
stamp("G")
def flag_store(base, lbl):
    e(f"""
s_cmp_eq_u32 s{sW}, 0
s_cbranch_scc0 {lbl}
s_lshl_b32 s{t0}, s{sTT}, 4
s_add_u32 s{t0}, s{t0}, s{sCG}
s_lshl_b32 s{t0}, s{t0}, 6
s_add_u32 s{t0}, s{t0}, {base}
v_mov_b32 v1, s{sEP}
v_mov_b32 v2, 0
buffer_store_dword v1, v2, {sr(dWS,4)}, s{t0} offen sc1
""")
    lab(lbl)
e(f"""
v_and_b32 v1, 31, v0
v_lshlrev_b32 v1, 3, v1
s_lshl_b32 s{t0}, s{sW}, 8
s_add_u32 s{t0}, s{t0}, {STAT}
v_add_u32 v1, s{t0}, v1
ds_read_b64 v[{vRstd}:{vAm}], v1
s_mov_b32 s{sP0}, {P1}
s_mov_b32 s{sP1}, 0
s_call_b64 {sr(sRET,2)}, L_CSP
s_waitcnt vmcnt(0) lgkmcnt(0)
""")
bar()
flag_store(WS_F1, "L_G_NF1")
stamp("G")
e(f"v_add_u32 v{vTile}, {P1}, v{vTrW1}\ns_call_b64 {sr(sRET,2)}, L_TILE")
bar()
e(f"s_mov_b32 s{sP0}, 0\ns_call_b64 {sr(sRET,2)}, L_EPI")
h_store(f"s_mov_b32 s{t0}, s{sC1}")
e(f"""
s_mov_b32 s{sP0}, {P2}
s_mov_b32 s{sP1}, 256
s_call_b64 {sr(sRET,2)}, L_CSP
s_waitcnt lgkmcnt(0)
""")
bar()
e(f"""
s_cmp_eq_u32 s{sFG}, 0
s_cbranch_scc1 L_G_NOC1
v_add_u32 v{vTile}, {P2}, v{vTrW1}
s_call_b64 {sr(sRET,2)}, L_TILE
""")
lab("L_G_NOC1")
bar()
stamp("G")
e(f"""
s_cmp_eq_u32 s{sFG}, 0
s_cbranch_scc1 L_G_NOC2
s_mov_b32 s{sP0}, 256
s_call_b64 {sr(sRET,2)}, L_EPI
""")
h_store(f"s_mov_b32 s{t0}, s{sC2}")
lab("L_G_NOC2")
e("s_waitcnt vmcnt(0)")
bar()
flag_store(WS_F2, "L_G_NF2")
if OPT["stop"] == 1:
    e("s_branch L_END")
GA, GW, GH = 16, 80, 96
vD0, vD1, vA0, vA1, vH0, vH1, vOm0, vOm1 = 4, 5, 6, 7, 8, 9, 10, 11
sKD, sKH, sRG, sE = 74, 75, 76, 77
e(f"""
s_lshr_b32 s{t0}, s{sT64}, 1
s_lshl_b32 s{t0}, s{t0}, 10
s_add_u32 s{t0}, s{t0}, {WS_F2}
v_and_b32 v1, 15, v0
v_lshlrev_b32 v1, 6, v1
v_add_u32 v3, s{t0}, v1
v_lshrrev_b32 v1, 3, v0
v_bfe_u32 v2, v0, 4, 1
v_lshlrev_b32 v2, 2, v2
v_xor_b32 v2, v2, v0
v_and_b32 v2, 7, v2
v_lshlrev_b32 v2, 4, v2
v_lshl_add_u32 v{vD0}, v1, 10, v2
v_add_u32 v{vD1}, 7168, v{vD0}
v_lshrrev_b32 v1, 5, v0
v_lshlrev_b32 v1, 10, v1
v_bfe_u32 v2, v0, 2, 2
v_lshl_add_u32 v1, v2, 7, v1
v_bfe_u32 v2, v0, 4, 1
v_lshl_add_u32 v1, v2, 5, v1
v_and_b32 v2, 1, v0
v_lshl_add_u32 v1, v2, 4, v1
v_bfe_u32 v2, v0, 1, 1
v_lshl_add_u32 v1, v2, 3, v1
v_bfe_u32 v2, v0, 3, 1
v_lshlrev_b32 v2, 6, v2
v_xor_b32 v1, v1, v2
s_lshl_b32 s{sRG}, s{sW}, 12
s_add_u32 s{sRG}, s{sRG}, {RING}
s_and_b32 s{t0}, s{sW}, 1
s_lshl_b32 s{t0}, s{t0}, 6
v_xor_b32 v1, s{t0}, v1
v_add_u32 v{vA0}, s{sRG}, v1
v_xor_b32 v{vA1}, 64, v{vA0}
s_lshr_b32 s{t0}, s{sW}, 1
s_mul_i32 s{t1}, s{t0}, 114688
s_sub_u32 s{t2}, 114688, s{t1}
v_add_u32 v{vH0}, s{t1}, v{vL16}
v_add_u32 v{vH1}, s{t2}, v{vL16}
s_mul_i32 s{sKD}, s{sW}, {28*16384}
s_lshl_b32 s{t1}, s{sCT}, 7
s_add_u32 s{sKD}, s{sKD}, s{t1}
s_mul_i32 s{sKH}, s{sT64}, 229376
s_mul_i32 s{t1}, s{sW}, {28*1024}
s_add_u32 s{sKH}, s{sKH}, s{t1}
s_add_u32 s{sKH}, s{sKH}, {WS_H}
v_and_b32 v1, 31, v0
v_lshlrev_b32 v1, 2, v1
s_lshl_b32 s{t0}, s{t0}, 7
v_add_u32 v2, s{t0}, v1
v_xor_b32 v1, 0x80, v2
""")
stamp("G")
poll("L_P2", 3)
stamp("G")
e(f"""
s_lshl_b32 s{t0}, s{sT64}, 8
s_add_u32 s{t0}, s{t0}, {WS_G}
buffer_load_dword v{vOm0}, v2, {sr(dWS,4)}, s{t0} offen {SC}
buffer_load_dword v{vOm1}, v1, {sr(dWS,4)}, s{t0} offen {SC}
""")
def g2_issue(slot, hbuf, ekd, ekh):
    e(f"""
s_add_u32 m0, s{sRG}, {2048*slot}
s_nop 0
buffer_load_dwordx4 v{vD0}, {sr(dW2,4)}, s{ekd} offen lds
buffer_load_dwordx4 v{vD1}, {sr(dW2,4)}, s{ekd} offen offset:1024 lds
buffer_load_dwordx4 {vr(GH+8*hbuf,4)}, v{vH0}, {sr(dWS,4)}, s{ekh} offen {SC}
buffer_load_dwordx4 {vr(GH+8*hbuf+4,4)}, v{vH1}, {sr(dWS,4)}, s{ekh} offen {SC}
""")
def g2_tr(dst, slot):
    return [f"ds_read_b64_tr_b16 {vr(dst+4*a+2*q,2)}, v{vA0+a} offset:{2048*slot + 512*q}" for a in range(2) for q in range(2)]
g2_issue(0, 0, sKD, sKH)
e(f"s_add_u32 s{t0}, s{sKD}, 16384\ns_add_u32 s{t1}, s{sKH}, 1024")
g2_issue(1, 1, t0, t1)
e("s_waitcnt vmcnt(6)")
for r in g2_tr(GW, 0): e(r)
e(f"s_add_u32 s{t0}, s{sKD}, 32768\ns_add_u32 s{t1}, s{sKH}, 2048\ns_waitcnt lgkmcnt(0)")
g2_issue(0, 2, t0, t1)
for i in range(64): e(f"v_mov_b32 v{GA+i}, 0")
e(f"s_mov_b32 s{sE}, 3")
lab("L_G2")
for k in range(4):
    e("s_waitcnt vmcnt(6)")
    rd = g2_tr(GW + 8*((k+1)&1), (k+1)&1)
    for i in range(4):
        a, b = i & 1, i >> 1
        e(f"v_mfma_f32_32x32x16_bf16 {vr(GA+16*i,16)}, {vr(GW+8*(k&1)+4*a,4)}, {vr(GH+8*k+4*b,4)}, {vr(GA+16*i,16)}")
        if i == 0:
            for r in rd: e(r)
    e(f"""
s_min_u32 s{t2}, s{sE}, 27
s_lshl_b32 s{t0}, s{t2}, 14
s_add_u32 s{t0}, s{t0}, s{sKD}
s_lshl_b32 s{t1}, s{t2}, 10
s_add_u32 s{t1}, s{t1}, s{sKH}
s_add_u32 s{sE}, s{sE}, 1
s_waitcnt lgkmcnt(0)
""")
    g2_issue((k+1)&1, (k+3)&3, t0, t1)
e(f"s_cmp_lt_u32 s{sE}, 31\ns_cbranch_scc1 L_G2")
stamp("G")
WOR, OR = 128, 192
e(f"""
s_waitcnt vmcnt(0)
v_sub_f32 v{vOm0}, 1.0, v{vOm0}
v_sub_f32 v{vOm1}, 1.0, v{vOm1}
s_lshl_b32 s{sKD}, s{sW}, 17
s_lshl_b32 s{t1}, s{sCT}, 7
s_add_u32 s{sKD}, s{sKD}, s{t1}
""")
def wo_issue(j):
    e(f"""
s_add_u32 m0, s{sRG}, {2048*(j&1)}
s_add_u32 s{t0}, s{sKD}, {16384*j}
buffer_load_dwordx4 v{vD0}, {sr(dWO,4)}, s{t0} offen lds
buffer_load_dwordx4 v{vD1}, {sr(dWO,4)}, s{t0} offen offset:1024 lds
""")
wo_issue(0); wo_issue(1)
for i in range(64): e(f"v_mul_f32 v{GA+i}, v{GA+i}, v{vOm0 if i < 32 else vOm1}")
for j in range(8):
    e(f"s_waitcnt vmcnt({2 if j < 7 else 0})")
    for r in g2_tr(WOR + 8*j, j & 1): e(r)
    if j + 2 < 8:
        e("s_waitcnt lgkmcnt(0)"); wo_issue(j + 2)
B2R = 80
e(f"""
s_and_b32 s{t0}, s{sW}, 1
s_lshl_b32 s{t0}, s{t0}, 7
s_add_u32 s{t0}, s{t0}, {B2T}
v_and_b32 v1, 32, v0
v_add_u32 v1, s{t0}, v1
ds_read_b128 {vr(B2R,4)}, v1
ds_read_b128 {vr(B2R+4,4)}, v1 offset:16
ds_read_b128 {vr(B2R+8,4)}, v1 offset:64
ds_read_b128 {vr(B2R+12,4)}, v1 offset:80
s_lshl_b32 s{t0}, s{sT64}, 5
s_lshl_b32 s{t1}, s{sW}, 3
s_add_u32 s{t0}, s{t0}, s{t1}
s_lshl_b32 s{t0}, s{t0}, 6
s_add_u32 s{t0}, s{t0}, {WS_F3}
v_and_b32 v1, 7, v0
v_lshlrev_b32 v1, 6, v1
v_add_u32 v3, s{t0}, v1
s_lshr_b32 s{t0}, s{sW}, 1
s_lshl_b32 s{t0}, s{t0}, 15
v_add_u32 v{vH0}, s{t0}, v{vL16}
v_xor_b32 v{vH1}, 0x8000, v{vH0}
s_lshl_b32 s{sKH}, s{sT64}, 16
s_lshl_b32 s{t1}, s{sW}, 13
s_add_u32 s{sKH}, s{sKH}, s{t1}
s_add_u32 s{sKH}, s{sKH}, {WS_O}
s_add_u32 s{sE}, s{sKH}, 4096
""")
for i in range(1, 4):
    e(f"s_xor_b32 s{t0}, s{sW}, {i}\ns_mul_i32 s{t0}, s{t0}, 12288\ns_add_u32 s{t0}, s{t0}, {4096*(i-1)}\nv_add_u32 v{95+i}, s{t0}, v{vL16}")
e(f"""
s_mul_i32 s{t0}, s{sW}, 12288
v_add_u32 v99, s{t0}, v{vL16}
v_and_b32 v1, 31, v0
v_lshlrev_b32 v1, 10, v1
v_lshrrev_b32 v2, 5, v0
v_lshl_add_u32 v12, v2, 4, v1
s_lshl_b32 s{sKD}, s{sT64}, 16
s_lshr_b32 s{t0}, s{sW}, 1
s_lshl_b32 s{t0}, s{t0}, 15
s_add_u32 s{sKD}, s{sKD}, s{t0}
s_lshl_b32 s{t0}, s{sCT}, 7
s_add_u32 s{sKD}, s{sKD}, s{t0}
s_and_b32 s{t0}, s{sW}, 1
s_lshl_b32 s{t0}, s{t0}, 6
s_add_u32 s{sKD}, s{sKD}, s{t0}
s_waitcnt lgkmcnt(0)
""")
stamp("G")
poll("L_P3", 3)
stamp("G")
for j in range(8):
    for b in range(2):
        e(f"buffer_load_dwordx4 {vr(OR+8*j+4*b,4)}, v{vH0+b}, {sr(dWS,4)}, s{sKH if j < 4 else sE} offen offset:{1024*(j&3)} {SC}")
for j in range(8):
    e(f"s_waitcnt vmcnt({14-2*j})")
    for i in range(4):
        a, b = i & 1, i >> 1
        e(f"v_mfma_f32_32x32x16_bf16 {vr(GA+16*i,16)}, {vr(WOR+8*j+4*a,4)}, {vr(OR+8*j+4*b,4)}, {vr(GA+16*i,16)}")
bar()
e("s_nop 8")
for i in range(1, 4):
    for q in range(4): e(f"ds_write_b128 v{95+i}, {vr(GA+16*i+4*q,4)} offset:{1024*q}")
e("s_waitcnt lgkmcnt(0)")
bar()
for i in range(12): e(f"ds_read_b128 {vr(128+4*i,4)}, v99 offset:{1024*i}")
for i in range(16): e(f"v_fmac_f32 v{GA+i}, v{B2R+i}, v{vOm0}")
for s in range(3):
    e(f"s_waitcnt lgkmcnt({8-4*s})")
    for i in range(16): e(f"v_add_f32 v{GA+i}, v{GA+i}, v{128+16*s+i}")
for i in range(8): e(f"v_cvt_pk_bf16_f32 v{32+i}, v{GA+2*i}, v{GA+2*i+1}")
e(f"buffer_store_dwordx4 v[32:35], v12, {sr(dOUT,4)}, s{sKD} offen")
e(f"buffer_store_dwordx4 v[36:39], v12, {sr(dOUT,4)}, s{sKD} offen offset:32")
stamp("G")
dump_stamps("G")
lab("L_END")
e("s_endpgm")
lab("L_G_EPSPIN")
e(f"s_mov_b32 s{sTO}, 100000\nv_mov_b32 v1, 0")
lab("L_G_EPSPIN2")
e(f"""
buffer_load_dword v{vPoll}, v1, {sr(dTMP,4)}, 0 offen sc1
s_waitcnt vmcnt(0)
v_readfirstlane_b32 s{sEP}, v{vPoll}
s_sub_u32 s{sTO}, s{sTO}, 1
s_cbranch_scc1 L_G_EPOK
s_cmp_eq_u32 s{sEP}, 0
s_cbranch_scc1 L_G_EPSPIN2
s_branch L_G_EPOK
""")
lab("L_DMAPAIR")
e(f"""
s_lshl_b32 s{t0}, s{sW}, 13
s_add_u32 s{sP0}, s{sP0}, s{t0}
s_lshl_b32 s{t0}, s{sW}, 1
s_add_u32 s{t0}, s{t0}, s{sROT}
s_lshl_b32 s{t0}, s{t0}, 2
s_mov_b32 s{t2}, 8
""")
lab("L_DMAPAIR1")
e(f"""
s_and_b32 s{t0}, s{t0}, 31
s_mul_i32 s{t1}, s{t0}, 57344
s_mov_b32 m0, s{sP0}
s_add_u32 s{t1}, s{t1}, s{sP1}
buffer_load_dwordx4 v{vW1}, {sr(dW1,4)}, s{t1} offen lds
s_add_u32 m0, s{sP0}, 32704
s_add_u32 s{t0}, s{t0}, 1
buffer_load_dwordx4 v{vW1}, {sr(dW1,4)}, s{t1} offen offset:64 lds
s_add_u32 s{sP0}, s{sP0}, 1024
s_sub_u32 s{t2}, s{t2}, 1
s_cmp_lg_u32 s{t2}, 0
s_cbranch_scc1 L_DMAPAIR1
s_setpc_b64 {sr(sRET,2)}
""")
lab("L_DMAKV")
e(f"""
s_lshl_b32 s{t0}, s{sW}, 13
s_add_u32 s{sP0}, s{sP0}, s{t0}
s_add_u32 s{t0}, s{sW}, s{sQB}
s_lshl_b32 s{t0}, s{t0}, 3
s_add_u32 s{t0}, s{t0}, s{sP1}
s_and_b32 s{t0}, s{t0}, 63
s_lshl_b32 s{t0}, s{t0}, 10
s_lshl_b32 s{t1}, s{sHD}, 16
s_add_u32 s{t0}, s{t0}, s{t1}
""")
for kv in range(2):
    for g in range(2):
        e(f"s_add_u32 m0, s{sP0}, {32768*kv + 4096*g}\ns_add_u32 s{t1}, s{t0}, {(WS_V if kv else WS_K) + 4096*g}")
        for j in range(4):
            e(f"buffer_load_dwordx4 v{vL16}, {sr(dWS,4)}, s{t1} offen offset:{1024*j} {SC} lds")
e(f"s_setpc_b64 {sr(sRET,2)}")
lab("L_TILE")
def t_reads(s): return [f"ds_read_b64_tr_b16 {vr(WF+4*(s%3)+2*q,2)}, v{vTile} offset:{1024*s + 256*q}" for q in range(2)]
e("s_setprio 2")
for r in t_reads(0) + t_reads(1): e(r)
for s in range(32):
    e(f"s_waitcnt lgkmcnt({2 if s < 31 else 0})")
    e(f"v_mfma_f32_32x32x16_bf16 {vr(ACC,16)}, {vr(WF+4*(s%3),4)}, {vr(XR+4*s,4)}, {vr(ACC,16) if s else 0}")
    if s + 2 < 32:
        for r in t_reads(s + 2): e(r)
e(f"s_setprio 0\ns_setpc_b64 {sr(sRET,2)}")
lab("L_EPI")
e(f"v_add_u32 v3, s{sP0}, v{vT}")
QO = (0, 16, 64, 80)
for q in range(4):
    e(f"ds_read_b128 {vr(32+4*q,4)}, v3 offset:{QO[q]}\nds_read_b128 {vr(48+4*q,4)}, v3 offset:{QO[q]+B1T-CS}")
e(f"s_mov_b32 s{t0}, {hx(f2u(GC2))}\ns_nop 0")
for q in range(4):
    e(f"s_waitcnt lgkmcnt({6-2*q})")
    R = range(4*q, 4*q + 4)
    for i in R: e(f"v_fma_f32 v{48+i}, v{32+i}, v{vAm}, v{48+i}")
    for i in R: e(f"v_fma_f32 v{ACC+i}, v{ACC+i}, v{vRstd}, v{48+i}")
    for i in R: e(f"v_mul_f32 v{32+i}, v{ACC+i}, v{ACC+i}")
    for i in R: e(f"v_fma_f32 v{32+i}, v{32+i}, s{t0}, v{vC1}")
    for i in R: e(f"v_mul_f32 v{32+i}, v{32+i}, v{ACC+i}")
    for i in R: e(f"v_exp_f32 v{32+i}, v{32+i}")
    for i in R: e(f"v_add_f32 v{32+i}, 1.0, v{32+i}")
    for i in R: e(f"v_rcp_f32 v{32+i}, v{32+i}")
    for i in R: e(f"v_mul_f32 v{ACC+i}, v{ACC+i}, v{32+i}")
    for i in (0, 2): e(f"v_cvt_pk_bf16_f32 v{PK+2*q+i//2}, v{ACC+4*q+i}, v{ACC+4*q+i+1}")
e(f"s_setpc_b64 {sr(sRET,2)}")
lab("L_CSP")
e(f"""
s_lshl_b32 s{t0}, s{sW}, 13
s_add_u32 s{t0}, s{t0}, s{sP0}
v_add_u32 v3, s{t0}, v{vTrW1}
s_mov_b32 s{t0}, 0x3f803f80
""")
def cs_reads(g):
    return [f"ds_read_b64_tr_b16 {vr(32+16*(g&1)+2*q,2)}, v3 offset:{32768*(g>>1) + 4096*(g&1) + 1024*(q>>1) + 256*(q&1)}" for q in range(8)]
for r in cs_reads(0): e(r)
for i in range(4): e(f"v_mov_b32 v{76+i}, 0")
for g in range(4):
    e("s_waitcnt lgkmcnt(0)")
    if g < 3:
        for r in cs_reads(g + 1): e(r)
    for i in range(16): e(f"v_dot2c_f32_bf16 v{76+2*(g>>1)+(i&1)}, s{t0}, v{32+16*(g&1)+i}")
e(f"""
v_add_u32 v3, s{sP1}, v{vCsA}
s_nop 2
v_add_f32 v76, v76, v77
v_add_f32 v78, v78, v79
ds_add_f32 v3, v76
ds_add_f32 v3, v78 offset:128
s_setpc_b64 {sr(sRET,2)}
""")
lab("L_CODE_END")
e(f".set CODE_SPAN, L_CODE_END - {KN}")
e(f"""
.section .rodata,"a"
.p2align 6
.amdhsa_kernel {KN}
  .amdhsa_next_free_vgpr 256
  .amdhsa_next_free_sgpr 102
  .amdhsa_accum_offset 256
  .amdhsa_group_segment_fixed_size 0
  .amdhsa_kernarg_size 96
  .amdhsa_user_sgpr_count 2
  .amdhsa_user_sgpr_kernarg_segment_ptr 1
  .amdhsa_system_sgpr_workgroup_id_x 1
  .amdhsa_float_denorm_mode_32 3
.end_amdhsa_kernel
""")
errs = hazard.check(L)
for x in errs: print("HAZARD", x, file=sys.stderr)
out = sys.argv[1] if len(sys.argv) > 1 else "cdna_kernels/" + NAME + ".s"
open(out, "w").write("\n".join(L) + "\n")
print("wrote", out, len(L), "lines;", len(errs), "hazards")
```

```python
import sys, math, struct
import hazard
NAME = "gated_mix__mha_block__mixer_channel_mlp__prompt"
KN = NAME + "_kernel"

OPT = dict(prof=0, stop=0, codepf=0, sc="sc1")
for a in sys.argv[2:]:
    k, v = a.split("="); OPT[k] = int(v) if v.lstrip("-").isdigit() else v
SC = OPT["sc"]

L = []
def e(s):
    for x in s.strip("\n").split("\n"): L.append(x)
def lab(n): L.append(n + ":")
def vr(a, n=1): return f"v{a}" if n == 1 else f"v[{a}:{a+n-1}]"
def sr(a, n=1): return f"s{a}" if n == 1 else f"s[{a}:{a+n-1}]"
def f2u(x): return struct.unpack("<I", struct.pack("<f", x))[0]
def hx(x): return f"0x{x & 0xffffffff:x}"

SLOTS = [0, 28672, 57344, 86016, 114688]
SLOT = [SLOTS[i] for i in (0, 1, 2, 3, 4, 0, 1, 2)]
P1, P2, RING, ONES = 86016, 0, 65536, 151552
TBL, CS, B1T, B2T, STAT, EPO = 155648, 157696, 158208, 158720, 158976, 160000
R0, R1 = P1, P2
LDS_SIZE = 163840
MB = 1 << 20
WS_Q, WS_K, WS_V, WS_H, WS_O, WS_G = 0, 2*MB, 4*MB, 8*MB, 16*MB, 18*MB
WS_F1, WS_F2, WS_F3, WS_EP, WS_PROF, WS_SIZE = 19*MB, 19*MB + 65536, 19*MB + 131072, 19*MB + 262144, 20*MB, 24*MB
sB, sW8, sW, sTT, sCG, sROT = 2, 3, 4, 5, 6, 7
dX, dWQ, dW1, dW2, dWO, dWS, dOUT, dTMP = 8, 12, 16, 20, 24, 28, 32, 36
kX, kWQ, kWO, kW1, kB1, kW2, kB2, kGW, kOUT, kDBG, kWS = 40, 42, 44, 48, 50, 52, 54, 56, 58, 60, 62
sEP = 64
t0, t1, t2, t3, t4, t5 = 65, 66, 67, 68, 69, 70
sRET = 72
sXb, sWb, sLx, sLw = 74, 75, 76, 77
sC1, sC2, sFG, sFA = 78, 79, 80, 81
sHD, sQB, sT64, sCT = 82, 83, 84, 85
sI, sBARI, sINC, sPASS, sTO = 86, 87, 88, 89, 46
sP0, sP1, sP2 = 47, 74, 75
nstamp_role = {}
stamp_reg = {"A": 15, "G": 124}
stamp_names = {"A": [], "G": []}
def stamp(role, name=""):
    if not OPT["prof"]: return
    i = len(stamp_names[role])
    stamp_names[role].append(name)
    e(f"s_memtime s[{t5}:{t5+1}]\ns_waitcnt lgkmcnt(0)\nv_writelane_b32 v{stamp_reg[role]}, s{t5}, {i}")
def stamp_entry(role):
    if not OPT["prof"]: return
    stamp_names[role].append("entry")
    e(f"v_writelane_b32 v{stamp_reg[role]}, s90, 0")
def dump_stamps(role):
    if not OPT["prof"]: return
    e(f"""
s_memrealtime s[{t5}:{t5+1}]
s_waitcnt lgkmcnt(0)
v_writelane_b32 v{stamp_reg[role]}, s{t5}, 63
v_writelane_b32 v{stamp_reg[role]}, s92, 62
s_lshl_b32 s{t0}, s{sB}, 3
s_add_u32 s{t0}, s{t0}, s{sW8}
s_lshl_b32 s{t0}, s{t0}, 8
s_add_u32 s{t0}, s{t0}, {WS_PROF}
v_lshlrev_b32 v1, 2, v0
buffer_store_dword v{stamp_reg[role]}, v1, {sr(dWS,4)}, s{t0} offen
""")
def srd(d, k, size):
    e(f"s_mov_b32 s{d}, s{k}\ns_and_b32 s{d+1}, s{k+1}, 0xffff\ns_mov_b32 s{d+2}, {hx(size)}\ns_mov_b32 s{d+3}, 0x20000")
def bar(): e("s_barrier")

vLane = 0
vXa = 4
vTr = 8
vTile = 11
vRstd, vAm = 12, 13
vL16, vLV = 14, 15
ACC = 16
WF = 64
vT, vC1, vTrW1, vCsA = 100, 101, 102, 103
PK = 104
vX0, vW, vW1, vTb, vPoll = 112, 116, 117, 126, 119
vGa, vGb = 1, 2
vQ = 120
XR = 128
SX, SY, OA, OB, CA, CB, KB, VB, vIDX, vK, vV, vMask = 128, 144, 160, 176, 192, 208, 224, 232, 248, 249, 250, 251
TF, SACC, SSA, SSB = 104, 112, 116, 120
dG, sGM, sGC, sGS2, sGST, sGB = 92, 96, 97, 98, 99, 100
LOG2E = 1.4426950408889634
QSCALE = 0.25 * LOG2E
GC1 = -2.0 * math.sqrt(2.0 / math.pi) * LOG2E
GC2 = GC1 * 0.044715

def poll(name, vaddr, first_issued=False):
    e(f"s_mov_b32 s{sTO}, 100000")
    if not first_issued:
        e(f"buffer_load_dword v{vPoll}, v{vaddr}, {sr(dWS,4)}, 0 offen sc1")
    lab(name)
    e(f"""
s_waitcnt vmcnt(0)
v_cmp_ne_u32 vcc, s{sEP}, v{vPoll}
s_cbranch_vccz {name}_ok
s_sub_u32 s{sTO}, s{sTO}, 1
s_cbranch_scc1 {name}_ok
buffer_load_dword v{vPoll}, v{vaddr}, {sr(dWS,4)}, 0 offen sc1
s_branch {name}
""")
    lab(name + "_ok")

def x_addr_calc():
    e(f"""
v_and_b32 v1, 31, v{vLane}
v_lshrrev_b32 v2, 5, v{vLane}
v_bfe_u32 v3, v{vLane}, 1, 3
v_xor_b32 v2, v2, v3
v_lshlrev_b32 v2, 4, v2
v_lshl_add_u32 v2, v1, 7, v2
s_lshl_b32 s{t0}, s{sW}, 12
v_add_u32 v{vXa}, s{t0}, v2
v_xor_b32 v{vXa+1}, 32, v{vXa}
v_xor_b32 v{vXa+2}, 64, v{vXa}
v_xor_b32 v{vXa+3}, 0x60, v{vXa}
""")
def x_base(u):
    hi = lambda uu: 65536 if SLOT[uu] >= 65536 else 0
    d = hi(u) - (hi(u-1) if u else 0)
    return d, SLOT[u] - hi(u)
def tr_addr(u):
    s = SLOT[u]
    if s < 57344: return vTr, s
    if s < 114688: return vTr + 1, s - 57344
    return vTr + 2, s - 114688

def pair_cols():
    e(f"""
s_lshr_b32 s{t0}, s{sCG}, 2
s_mul_i32 s{t0}, s{t0}, 14
s_and_b32 s{t1}, s{sCG}, 3
s_lshl_b32 s{t2}, s{t1}, 3
s_lshr_b32 s{t3}, 0x0a080400, s{t2}
s_and_b32 s{t3}, s{t3}, 0xff
s_add_u32 s{sC1}, s{t0}, s{t3}
s_lshr_b32 s{t3}, 0x0c060602, s{t2}
s_and_b32 s{t3}, s{t3}, 0xff
s_add_u32 s{sC2}, s{t0}, s{t3}
s_cmp_lg_u32 s{t1}, 2
s_cselect_b32 s{sFG}, 1, 0
s_cmp_lg_u32 s{t1}, 1
s_cselect_b32 s{sFA}, 1, 0
""")

def trw1_calc():
    e(f"""
v_lshrrev_b32 v1, 5, v{vLane}
v_lshlrev_b32 v1, 9, v1
v_bfe_u32 v2, v{vLane}, 2, 2
v_lshl_add_u32 v1, v2, 6, v1
v_bfe_u32 v2, v{vLane}, 4, 1
v_lshl_add_u32 v1, v2, 5, v1
v_and_b32 v2, 1, v{vLane}
v_lshl_add_u32 v3, v2, 4, v1
v_bfe_u32 v2, v{vLane}, 1, 1
v_lshl_add_u32 v{vTrW1}, v2, 3, v3
v_lshrrev_b32 v2, 5, v{vLane}
v_lshlrev_b32 v2, 5, v2
v_add_u32 v{vT}, {CS}, v2
v_mov_b32 v{vC1}, {hx(f2u(GC1))}
v_lshlrev_b32 v{vL16}, 4, v{vLane}
""")

e(f"""; fused gated mix: MHA block + channel MLP, one persistent launch of 256 workgroups
; @launch grid=(256,1,1) block=(512,1,1) lds={LDS_SIZE}
.amdgcn_target "amdgcn-amd-amdhsa--gfx950"
.text
.globl {KN}
.p2align 8
.type {KN},@function""")
lab(KN)
e(f"""
s_cmp_ge_u32 s{sB}, 256
s_cbranch_scc1 L_END
{'s_memtime s[90:91]' if OPT['prof'] else ''}
{'s_memrealtime s[92:93]' if OPT['prof'] else ''}
s_load_dwordx8 s[40:47], s[0:1], 0
s_load_dwordx8 s[48:55], s[0:1], 32
s_load_dwordx8 s[56:63], s[0:1], 64
v_lshrrev_b32 v1, 6, v0
v_and_b32 v0, 63, v0
s_and_b32 s{t0}, s{sB}, 7
v_readfirstlane_b32 s{sW8}, v1
s_lshr_b32 s{t1}, s{sB}, 3
s_and_b32 s{t2}, s{t0}, 1
s_lshl_b32 s{t2}, s{t2}, 3
s_and_b32 s{sQB}, s{t1}, 7
s_add_u32 s{sTT}, s{t2}, s{sQB}
s_lshr_b32 s{t2}, s{t0}, 1
s_lshl_b32 s{t2}, s{t2}, 2
s_lshr_b32 s{t3}, s{t1}, 3
s_add_u32 s{sCG}, s{t2}, s{t3}
s_lshl_b32 s{t2}, s{t3}, 1
s_add_u32 s{sROT}, s{sTT}, s{t2}
s_and_b32 s{sROT}, s{sROT}, 7
s_lshl_b32 s{t0}, s{t0}, 2
s_add_u32 s{sHD}, s{t0}, s{t3}
s_mov_b32 s{sT64}, s{sHD}
s_mov_b32 s{sCT}, s{sQB}
s_and_b32 s{sW}, s{sW8}, 3
s_cmp_ge_u32 s{sW8}, 4
s_cbranch_scc0 L_G
""")
e(f"""
v_lshrrev_b32 v1, 3, v0
v_lshrrev_b32 v2, 4, v0
v_xor_b32 v2, v2, v0
v_and_b32 v2, 7, v2
v_lshlrev_b32 v2, 4, v2
v_lshl_add_u32 v{vX0}, v1, 10, v2
v_xor_b32 v3, 64, v{vX0}
v_add_u32 v{vX0+1}, 7168, v3
v_add_u32 v{vX0+2}, 14336, v{vX0}
v_add_u32 v{vX0+3}, 21504, v3
v_lshrrev_b32 v1, 2, v0
v_and_b32 v2, 3, v0
v_lshlrev_b32 v2, 4, v2
v_mul_u32_u24 v3, 3072, v1
v_add_u32 v{vW}, v3, v2
v_mul_u32_u24 v3, 3584, v1
v_add_u32 v{vW1}, v3, v2
s_lshl_b32 s{sXb}, s{sTT}, 17
s_lshl_b32 s{t0}, s{sW}, 15
s_add_u32 s{sXb}, s{sXb}, s{t0}
s_mul_i32 s{sWb}, s{sW}, 49152
s_mul_i32 s{t0}, s{sCG}, 192
s_add_u32 s{sWb}, s{sWb}, s{t0}
s_lshl_b32 s{sLx}, s{sW}, 12
s_mul_i32 s{sLw}, s{sW}, 3072
s_add_u32 s{sLw}, s{sLw}, 16384
s_waitcnt lgkmcnt(0)
""")
stamp_entry("A")
srd(dX, kX, 2048*1024); srd(dWQ, kWQ, 512*3072)
def dma_unit(u):
    e(f"""
s_add_u32 s{t0}, s{sROT}, {u}
s_and_b32 s{t0}, s{t0}, 7
s_lshl_b32 s{t1}, s{t0}, 7
s_add_u32 s{t1}, s{t1}, s{sXb}
s_add_u32 m0, s{sLx}, {SLOT[u]}
s_mul_i32 s{t2}, s{t0}, 196608
""")
    for j in range(4):
        e(f"buffer_load_dwordx4 v{vX0+j}, {sr(dX,4)}, s{t1} offen offset:{1024*j} lds")
    e(f"""
s_add_u32 m0, s{sLw}, {SLOT[u]}
s_add_u32 s{t2}, s{t2}, s{sWb}
buffer_load_dwordx4 v{vW}, {sr(dWQ,4)}, s{t2} offen lds
s_add_u32 m0, m0, 960
s_nop 0
buffer_load_dwordx4 v{vW}, {sr(dWQ,4)}, s{t2} offen offset:64 lds
s_add_u32 m0, m0, 960
s_nop 0
buffer_load_dwordx4 v{vW}, {sr(dWQ,4)}, s{t2} offen offset:128 lds
""")
dma_unit(0); dma_unit(1)
stamp("A", "issued")
srd(dW1, kW1, 512*3584); srd(dWS, kWS, WS_SIZE)
x_addr_calc()
trw1_calc()
pair_cols()
e("s_waitcnt vmcnt(7)")
bar()
stamp("A", "bar0")
for u in range(8):
    d, imm = x_base(u)
    if d:
        for s in range(4): e(f"v_add_u32 v{vXa+s}, {hx(d)}, v{vXa+s}")
    for s in range(4):
        e(f"ds_read_b128 {vr(XR+4*(4*u+s),4)}, v{vXa+s} offset:{imm}")
    if u <= 5: dma_unit(u + 2)
    if u >= 6:
        e(f"s_mov_b32 s{sP0}, {P1}\ns_lshl_b32 s{sP1}, s{sC1}, 6\ns_mov_b32 s{sP2}, {4*(u-6)}\ns_call_b64 {sr(sRET,2)}, L_DMAPAIR")
    if u == 7:
        e(f"v_mov_b32 v1, {EPO}\nds_read_b32 v3, v1")
    if u < 7:
        if OPT["prof"] == 3: stamp("A", f"st{u}")
        e(f"s_waitcnt vmcnt({7 if u < 6 else 8}) lgkmcnt(0)")
        if OPT["prof"] == 3: stamp("A", f"vm{u+1}")
        bar()
        if OPT["prof"] == 3: stamp("A", f"b{u+1}")
e("s_waitcnt lgkmcnt(0)")
bar()
stamp("A", "ph1_end")
e(f"""
v_readfirstlane_b32 s{sEP}, v3
s_lshl_b32 s{sGM}, s{sW}, 10
s_add_u32 s{sGM}, s{sGM}, {P2}
s_lshl_b32 s{sGS2}, s{sROT}, 2
s_add_u32 s{sGS2}, s{sGS2}, s{sW}
s_lshl_b32 s{sGST}, s{sC2}, 6
s_waitcnt vmcnt(0)
""")
bar()
stamp("A", "bar9")
e(f"v_add_u32 v{vTile}, {P1+32768}, v{vTrW1}\ns_call_b64 {sr(sRET,2)}, L_TILEW")
stamp("A", "tile_b")
bar()
stamp("A", "bar10")
e(f"""
v_and_b32 v1, 31, v0
v_lshlrev_b32 v1, 3, v1
s_lshl_b32 s{t0}, s{sW}, 8
s_add_u32 s{t0}, s{t0}, {STAT}
v_add_u32 v1, s{t0}, v1
ds_read_b64 v[{vRstd}:{vAm}], v1
s_mov_b32 s{sP0}, 128
s_call_b64 {sr(sRET,2)}, L_EPI
""")
stamp("A", "epi_b")
e(f"""
s_lshr_b32 s{t0}, s{sHD}, 1
s_mul_i32 s{t1}, s{t0}, 0x5556
s_lshr_b32 s{sP2}, s{t1}, 16
s_add_u32 s{t1}, s{t0}, 16
s_mul_i32 s{t1}, s{t1}, 0x5556
s_lshr_b32 s{t1}, s{t1}, 16
s_add_u32 s{t2}, s{t0}, 32
s_mul_i32 s{t2}, s{t2}, 0x5556
s_lshr_b32 s{t2}, s{t2}, 16
s_lshl_b32 s{t3}, s{sQB}, 5
s_add_u32 s{t3}, s{t3}, s{sP2}
v_and_b32 v16, 15, v0
v_lshlrev_b32 v16, 4, v16
v_add_u32 v17, s{t1}, v16
v_add_u32 v18, s{t2}, v16
v_and_b32 v19, 1, v0
v_lshlrev_b32 v19, 4, v19
v_add_u32 v19, s{t3}, v19
v_cmp_gt_u32 vcc, 16, v0
s_nop 1
v_cndmask_b32 v17, v18, v17, vcc
v_cmp_gt_u32 vcc, 32, v0
s_nop 1
v_cndmask_b32 v17, v19, v17, vcc
v_lshlrev_b32 v17, 6, v17
v_add_u32 v{vTb}, {WS_F1}, v17
buffer_load_dword v{vPoll}, v{vTb}, {sr(dWS,4)}, 0 offen sc1
s_waitcnt vmcnt(1)
""")
bar()
stamp("A", "bar11")
poll("L_P1", vTb, first_issued=True)
stamp("A", "poll1")
e(f"""
s_lshl_b32 s{t0}, s{sHD}, 16
s_lshl_b32 s{t1}, s{sQB}, 13
s_add_u32 s{t0}, s{t0}, s{t1}
s_lshl_b32 s{t1}, s{sW}, 11
s_add_u32 s{t0}, s{t0}, s{t1}
buffer_load_dwordx4 {vr(vQ,4)}, v{vL16}, {sr(dWS,4)}, s{t0} offen {SC}
buffer_load_dwordx4 {vr(vQ+4,4)}, v{vL16}, {sr(dWS,4)}, s{t0} offen offset:1024 {SC}
s_lshl_b32 s{t0}, s{sP2}, 13
s_lshl_b32 s{t1}, s{sQB}, 10
s_add_u32 s{t0}, s{t0}, s{t1}
s_lshl_b32 s{t1}, s{sW}, 8
s_add_u32 s{t0}, s{t0}, s{t1}
s_add_u32 s{t0}, s{t0}, {WS_G}
v_and_b32 v16, 31, v0
v_lshlrev_b32 v16, 2, v16
buffer_load_dword v{vGa}, v16, {sr(dWS,4)}, s{t0} offen {SC}
buffer_load_dword v{vGb}, v16, {sr(dWS,4)}, s{t0} offen offset:128 {SC}
""")
def h_store(sTile_expr):
    e(sTile_expr)
    e(f"""
s_lshl_b32 s{t0}, s{t0}, 11
s_lshl_b32 s{t1}, s{sTT}, 2
s_add_u32 s{t1}, s{t1}, s{sW}
s_mul_i32 s{t1}, s{t1}, 114688
s_add_u32 s{t0}, s{t0}, s{t1}
s_add_u32 s{t0}, s{t0}, {WS_H}
buffer_store_dwordx4 {vr(PK,4)}, v{vL16}, {sr(dWS,4)}, s{t0} offen {SC}
buffer_store_dwordx4 {vr(PK+4,4)}, v{vL16}, {sr(dWS,4)}, s{t0} offen offset:1024 {SC}
""")
h_store(f"s_add_u32 s{t0}, s{sC1}, 1")
stamp("A", "kvissued")
e(f"""
s_cmp_eq_u32 s{sFA}, 0
s_cbranch_scc0 L_A_D1
s_mov_b32 s{sP0}, {R0}
s_mov_b32 s{sP1}, 0
s_call_b64 {sr(sRET,2)}, L_DMAKV
s_branch L_A_NOD1
""")
lab("L_A_D1")
e(f"""
s_lshl_b32 s{t0}, s{sW}, 11
s_add_u32 s{sGM}, s{t0}, {R0}
s_lshl_b32 s{sGC}, s{sHD}, 16
s_add_u32 s{sGC}, s{sGC}, s{t0}
s_lshl_b32 s{sGS2}, s{sQB}, 3
v_add_u32 v{vTile}, {P2+32768}, v{vTrW1}
s_call_b64 {sr(sRET,2)}, L_TILEK
""")
lab("L_A_NOD1")
stamp("A", "tile_d")
bar()
stamp("A", "bar12")
e(f"""
s_cmp_eq_u32 s{sFA}, 0
s_cbranch_scc1 L_A_NOD2
s_mov_b32 s{sP0}, 384
s_call_b64 {sr(sRET,2)}, L_EPI
""")
h_store(f"s_add_u32 s{t0}, s{sC2}, 1")
e("s_waitcnt vmcnt(2)\ns_branch L_A_NOD3")
lab("L_A_NOD2")
e("s_waitcnt vmcnt(0)")
lab("L_A_NOD3")
stamp("A", "epi_d")
bar()
stamp("A", "bar13")
e(f"""
s_setprio 1
s_mov_b32 s{sPASS}, 0
s_mov_b32 s{sBARI}, 1
v_mov_b32 v{vIDX}, 0xdddddddd
""")
if OPT["stop"] == 1:
    e("s_waitcnt vmcnt(0)"); bar(); e("s_branch L_END")
lab("L_ATT")
e(f"""
v_add_u32 v{vK}, {R0}, v{vL16}
v_lshrrev_b32 v16, 5, v0
v_lshlrev_b32 v16, 8, v16
v_bfe_u32 v17, v0, 2, 2
v_lshl_add_u32 v16, v17, 5, v16
v_and_b32 v17, 3, v0
v_lshl_add_u32 v16, v17, 3, v16
v_add_u32 v16, {R0+32768}, v16
v_and_b32 v17, 15, v0
v_lshlrev_b32 v17, 3, v17
v_add_u32 v17, {ONES+128}, v17
v_bfe_u32 v18, v0, 4, 1
v_xor_b32 v{vMask}, 1, v18
v_cmp_eq_u32 vcc, 0, v18
ds_read_b128 {vr(KB,4)}, v{vK}
ds_read_b128 {vr(KB+4,4)}, v{vK} offset:1024
v_cndmask_b32 v{vV}, v17, v16, vcc
""")
def v_reads(buf, tig):
    return [f"ds_read_b64_tr_b16 {vr(VB+8*buf+2*q,2)}, v{vV} offset:{1024*tig + 512*(q>>1) + 128*(q&1)}" for q in range(4)]
for r in v_reads(0, 0): e(r)
for i in range(16): e(f"v_mov_b32 v{OA+i}, 0")
for i in range(16): e(f"v_mov_b32 v{OB+i}, 0")
for i in range(4): e(f"v_mov_b32 v{VB+12+i}, 0")
e(f"""
s_mov_b32 s{sI}, 0
s_waitcnt lgkmcnt(0)
s_cmp_eq_u32 s{sPASS}, 0
s_cbranch_scc0 L_ATT_HAVEC
v_mfma_f32_32x32x16_bf16 {vr(SX,16)}, {vr(KB,4)}, {vr(vQ,4)}, 0
v_mfma_f32_32x32x16_bf16 {vr(SY,16)}, {vr(KB,4)}, {vr(vQ+4,4)}, 0
s_nop 10
""")
def maxtree(dst, src, init=None):
    if init is None:
        e(f"v_max3_f32 v{dst}, v{src}, v{src+1}, v{src+2}")
        k = 3
    else:
        k = 0
    while k < 16:
        if k + 1 < 16: e(f"v_max3_f32 v{dst}, v{dst}, v{src+k}, v{src+k+1}"); k += 2
        else: e(f"v_max_f32 v{dst}, v{dst}, v{src+k}"); k += 1
maxtree(16, SX); maxtree(17, SY)
lab("L_ATT_SETC")
e(f"""
v_mov_b32 v18, v16
v_mov_b32 v19, v17
s_nop 1
v_permlane32_swap_b32 v16, v18
v_permlane32_swap_b32 v17, v19
v_max_f32 v16, v16, v18
v_max_f32 v17, v17, v19
v_sub_f32 v{CA}, 0, v16
v_sub_f32 v{CB}, 0, v17
""")
for i in range(1, 16): e(f"v_mov_b32 v{CA+i}, v{CA}\nv_mov_b32 v{CB+i}, v{CB}")
e(f"s_cmp_eq_u32 s{sPASS}, 0\ns_cbranch_scc0 L_ATT")
lab("L_ATT_HAVEC")
e(f"s_nop 1\nv_mfma_f32_32x32x16_bf16 {vr(SX,16)}, {vr(KB,4)}, {vr(vQ,4)}, {vr(CA,16)}\ns_nop 11")
N1, N2, N3 = OPT.get("n1", 2), OPT.get("n2", 3), OPT.get("n3", 5)
def half_step(cur, oth, Ocur, Ooth, Qoth, Coth, Kf, V0, V1prev, ins):
    i = 0
    def ex(n):
        nonlocal i
        for _ in range(n):
            e(f"v_exp_f32 v{cur+i}, v{cur+i}")
            for x in ins.get(i, []): e(x)
            i += 1
    ex(N1)
    e(f"v_smfmac_f32_32x32x32_bf16 {vr(Ooth,16)}, {vr(V1prev,4)}, {vr(oth+8,8)}, v{vIDX}")
    for x in ins.get("m0", []): e(x)
    ex(N2)
    e(f"v_mfma_f32_32x32x16_bf16 {vr(oth,16)}, {vr(Kf,4)}, {vr(Qoth,4)}, {vr(Coth,16)}")
    for x in ins.get("m1", []): e(x)
    ex(N3)
    e(f"v_smfmac_f32_32x32x32_bf16 {vr(Ocur,16)}, {vr(V0,4)}, {vr(cur,8)}, v{vIDX}")
    for x in ins.get("m2", []): e(x)
    ex(16 - i)
e(".p2align 6")
lab("L_ATT_LOOP")
e(f"s_cmp_eq_u32 s{sI}, s{sBARI}\ns_cbranch_scc1 L_ATT_BAR")
lab("L_ATT_BARRET")
if OPT["prof"] == 2:
    e(f"s_memtime s[{t5}:{t5+1}]\ns_add_u32 m0, s{sI}, 32\ns_waitcnt lgkmcnt(0)\nv_writelane_b32 v15, s{t5}, m0")
e(f"s_movk_i32 s{sINC}, 0x1000\ns_cmp_eq_u32 s{sI}, 7\ns_cmov_b32 s{sINC}, {hx(R1 - R0 - 28672)}")
for t in range(4):
    p = t & 1
    v = v_reads(p ^ 1, (t + 1) & 3)
    fa = {"m0": v[0:2], "m1": ["s_waitcnt lgkmcnt(3)"], "m2": v[2:4]}
    if t == 2: fa[13] = [f"v_mad_i32_i24 v{vV}, v{vMask}, s{sINC}, v{vV}"]
    half_step(SX, SY, OA, OB, vQ+4, CB, KB + 4*p, VB + 8*p, VB + 8*(p^1) + 4, fa)
    fb = {"m0": ["s_waitcnt lgkmcnt(4)"], "m1": [f"ds_read_b128 {vr(KB+4*p,4)}, v{vK} offset:{1024*((t+2)&3)}"]}
    if t == 1: fb[13] = [f"v_add_u32 v{vK}, s{sINC}, v{vK}"]
    if t == 3: fb["m2"] = [f"s_add_u32 s{sI}, s{sI}, 1", f"s_cmp_lt_u32 s{sI}, 16"]
    half_step(SY, SX, OB, OA, vQ, CA, KB + 4*(p^1), VB + 8*p, VB + 8*p + 4, fb)
e("s_cbranch_scc1 L_ATT_LOOP")
e(f"s_nop 1\nv_smfmac_f32_32x32x32_bf16 {vr(OB,16)}, {vr(VB+12,4)}, {vr(SY+8,8)}, v{vIDX}")
stamp("A", "loop_end")
e(f"""
s_lshl_b32 s{t0}, s{sQB}, 3
s_lshl_b32 s{t1}, s{sW}, 1
s_add_u32 s{t0}, s{t0}, s{t1}
s_lshl_b32 s{t0}, s{t0}, 15
s_lshl_b32 s{t1}, s{sHD}, 10
s_add_u32 s{t0}, s{t0}, s{t1}
s_add_u32 s{t0}, s{t0}, {WS_O}
s_mov_b32 s{t1}, 0x7f000000
s_nop 3
v_add_f32 v16, abs(v{OA}), v{OA+8}
v_rcp_f32 v18, v{OA+8}
""")
for i in range(1, 8): e(f"v_add_f32 v16, abs(v{OA+i}), v16")
e(f"v_mul_f32 v18, v18, v{vGa}\nv_add_f32 v17, abs(v{OB}), v{OB+8}\nv_rcp_f32 v19, v{OB+8}")
for i in range(1, 8): e(f"v_add_f32 v17, abs(v{OB+i}), v17")
e(f"""
v_mul_f32 v19, v19, v{vGb}
v_add_f32 v16, v16, v17
v_cmp_ngt_f32 vcc, s{t1}, v16
s_cbranch_vccnz L_ATT_FB
""")
lab("L_ATT_OK")
for i in range(8): e(f"v_mul_f32 v{OA+i}, v{OA+i}, v18")
for i in range(4): e(f"v_cvt_pk_bf16_f32 v{20+i}, v{OA+2*i}, v{OA+2*i+1}")
e(f"buffer_store_dwordx4 v[20:23], v{vL16}, {sr(dWS,4)}, s{t0} offen {SC}")
for i in range(8): e(f"v_mul_f32 v{OB+i}, v{OB+i}, v19")
for i in range(4): e(f"v_cvt_pk_bf16_f32 v{24+i}, v{OB+2*i}, v{OB+2*i+1}")
e(f"""
s_add_u32 s{t0}, s{t0}, 32768
buffer_store_dwordx4 v[24:27], v{vL16}, {sr(dWS,4)}, s{t0} offen {SC}
s_lshl_b32 s{t0}, s{sQB}, 2
s_add_u32 s{t0}, s{t0}, s{sW}
s_lshl_b32 s{t0}, s{t0}, 5
s_add_u32 s{t0}, s{t0}, s{sHD}
s_lshl_b32 s{t0}, s{t0}, 6
s_add_u32 s{t0}, s{t0}, {WS_F3}
v_mov_b32 v16, s{sEP}
v_mov_b32 v17, 0
s_waitcnt vmcnt(0)
buffer_store_dword v16, v17, {sr(dWS,4)}, s{t0} offen sc1
""")
stamp("A", "end")
dump_stamps("A")
e("s_endpgm")
lab("L_ATT_BAR")
e("s_waitcnt vmcnt(0)"); bar(); e("s_branch L_ATT_BARRET")
lab("L_ATT_FB")
e(f"""
s_cmp_eq_u32 s{sPASS}, 0
s_cbranch_scc0 L_ATT_OK
s_mov_b32 s{sPASS}, 1
s_mov_b32 s{sBARI}, -1
s_mov_b32 s{sI}, 0
v_add_u32 v{vK}, {R0}, v{vL16}
v_mov_b32 v16, 0xff800000
v_mov_b32 v17, 0xff800000
""")
lab("L_FB_LOOP")
e(f"""
ds_read_b128 {vr(KB,4)}, v{vK}
s_movk_i32 s{sINC}, 0x400
s_cmp_eq_u32 s{sI}, 31
s_cmov_b32 s{sINC}, {hx(R1 - R0 - 31744)}
s_waitcnt lgkmcnt(0)
v_mfma_f32_32x32x16_bf16 {vr(SX,16)}, {vr(KB,4)}, {vr(vQ,4)}, 0
v_mfma_f32_32x32x16_bf16 {vr(SY,16)}, {vr(KB,4)}, {vr(vQ+4,4)}, 0
v_add_u32 v{vK}, s{sINC}, v{vK}
s_nop 10
""")
maxtree(16, SX, init=True); maxtree(17, SY, init=True)
e(f"""
s_add_u32 s{sI}, s{sI}, 1
s_cmp_lt_u32 s{sI}, 64
s_cbranch_scc1 L_FB_LOOP
s_branch L_ATT_SETC
""")

lab("L_G")
x_addr_calc()
e(f"""
v_lshrrev_b32 v1, 5, v0
v_lshlrev_b32 v1, 9, v1
v_bfe_u32 v2, v0, 2, 2
v_lshl_add_u32 v1, v2, 6, v1
v_bfe_u32 v2, v0, 4, 1
v_lshl_add_u32 v1, v2, 5, v1
v_and_b32 v2, 3, v0
v_lshl_add_u32 v1, v2, 3, v1
v_add_u32 v{vTr}, 16384, v1
v_add_u32 v{vTr+1}, {16384+57344}, v1
v_add_u32 v{vTr+2}, {16384+114688}, v1
""")
trw1_calc()
pair_cols()
e(f"""
v_and_b32 v1, 31, v0
v_lshlrev_b32 v1, 5, v1
v_lshrrev_b32 v2, 5, v0
v_lshl_add_u32 v{vLV}, v2, 4, v1
v_and_b32 v1, 3, v0
v_bfe_u32 v2, v0, 2, 1
v_lshl_or_b32 v1, v2, 3, v1
v_bfe_u32 v2, v0, 3, 1
v_lshl_or_b32 v1, v2, 2, v1
v_lshlrev_b32 v1, 2, v1
v_add_u32 v{vCsA}, {CS}, v1
v_and_b32 v1, 15, v0
v_lshrrev_b32 v2, 4, v0
v_xor_b32 v3, v1, v2
v_and_b32 v3, 1, v3
v_lshrrev_b32 v16, 2, v1
v_or_b32 v3, v3, v16
v_lshrrev_b32 v16, 1, v2
v_cmp_gt_u32 vcc, 2, v1
v_mov_b32 v17, 2
s_nop 0
v_cndmask_b32 v16, v16, v17, vcc
v_cmp_eq_u32 vcc, 0, v3
v_mov_b32 v17, 3
s_nop 0
v_cndmask_b32 v16, v17, v16, vcc
v_lshlrev_b32 v16, 4, v16
v_add_u32 v{vTb}, {TBL}, v16
s_waitcnt lgkmcnt(0)
""")
for i in range(12): e(f"v_mov_b32 v{SACC+i}, 0")
stamp_entry("G")
srd(dWS, kWS, WS_SIZE)
e(f"""
s_cmp_eq_u32 s{sW}, 1
s_cbranch_scc1 L_G_T1
s_cmp_eq_u32 s{sW}, 2
s_cbranch_scc1 L_G_T2
s_cmp_eq_u32 s{sW}, 3
s_cbranch_scc1 L_G_T3
""")
srd(dTMP, kGW, 1024)
e(f"""
buffer_load_dwordx4 v[16:19], v{vL16}, {sr(dTMP,4)}, 0 offen
v_lshrrev_b32 v1, 1, v0
s_lshl_b32 s{t0}, s{sROT}, 2
v_subrev_u32 v1, s{t0}, v1
v_and_b32 v1, 31, v1
v_lshlrev_b32 v1, 6, v1
v_and_b32 v2, 1, v0
v_lshl_add_u32 v1, v2, 4, v1
v_add_u32 v1, {TBL}, v1
v_and_b32 v2, 31, v0
v_lshlrev_b32 v2, 6, v2
v_lshrrev_b32 v3, 5, v0
v_lshl_add_u32 v2, v3, 4, v2
v_add_u32 v2, {TBL+32}, v2
v_subrev_u32 v3, 1, v3
v_and_b32 v20, 0x3f803f80, v3
v_mov_b32 v21, v20
v_mov_b32 v22, v20
v_mov_b32 v23, v20
ds_write_b128 v2, v[20:23]
s_cmp_eq_u32 s{sB}, 0
s_cbranch_scc0 L_G_T0B
v_mov_b32 v24, {WS_EP}
buffer_load_dword v25, v24, {sr(dWS,4)}, 0 offen sc1
s_waitcnt vmcnt(0)
ds_write_b128 v1, v[16:19]
v_add_u32 v25, 1, v25
v_max_u32 v25, 1, v25
""")
srd(dTMP, kDBG, 256)
e(f"""
v_mov_b32 v26, 0
buffer_store_dword v25, v26, {sr(dTMP,4)}, 0 offen sc1
buffer_store_dword v25, v24, {sr(dWS,4)}, 0 offen sc1
s_branch L_G_TDONE
""")
lab("L_G_T0B")
e("s_waitcnt vmcnt(0)\nds_write_b128 v1, v[16:19]\ns_branch L_G_TDONE")
lab("L_G_T1")
srd(dTMP, kB1, 3584)
e(f"""
v_and_b32 v1, 31, v0
v_lshlrev_b32 v1, 2, v1
s_lshl_b32 s{t0}, s{sC1}, 6
s_lshl_b32 s{t1}, s{sC2}, 6
v_add_u32 v2, s{t0}, v1
v_add_u32 v3, s{t1}, v1
v_cmp_gt_u32 vcc, 32, v0
v_lshlrev_b32 v1, 3, v0
v_mov_b32 v18, 0
v_cndmask_b32 v2, v3, v2, vcc
buffer_load_dword v16, v2, {sr(dTMP,4)}, 0 offen
v_mov_b32 v19, 0
v_add_u32 v1, {CS}, v1
ds_write_b64 v1, v[18:19]
s_waitcnt vmcnt(0)
v_and_b32 v17, 0xffff0000, v16
v_lshlrev_b32 v16, 16, v16
ds_write_b64 v1, v[16:17] offset:{B1T-CS}
s_branch L_G_TDONE
""")
lab("L_G_T2")
srd(dTMP, kB2, 1024)
e(f"""
v_and_b32 v1, 31, v0
v_lshlrev_b32 v2, 2, v1
s_lshl_b32 s{t0}, s{sCT}, 7
buffer_load_dword v16, v2, {sr(dTMP,4)}, s{t0} offen
v_lshlrev_b32 v1, 3, v1
v_add_u32 v1, {B2T}, v1
s_waitcnt vmcnt(0)
v_and_b32 v17, 0xffff0000, v16
v_lshlrev_b32 v16, 16, v16
ds_write_b64 v1, v[16:17]
s_branch L_G_TDONE
""")
lab("L_G_T3")
if OPT["codepf"]:
    e(f"""
s_getpc_b64 s[{dTMP}:{dTMP+1}]
s_and_b32 s{dTMP}, s{dTMP}, 0xffffff00
s_and_b32 s{dTMP+1}, s{dTMP+1}, 0xffff
s_mov_b32 s{dTMP+2}, CODE_SPAN
s_mov_b32 s{dTMP+3}, 0x20000
s_lshr_b32 s{t0}, s{sB}, 3
s_lshl_b32 s{t0}, s{t0}, 10
buffer_load_dwordx4 v[24:27], v{vL16}, {sr(dTMP,4)}, s{t0} offen
""")
e(f"""
v_add_u32 v1, {ONES}, v{vL16}
v_mov_b32 v16, 0x3f803f80
v_mov_b32 v17, v16
v_mov_b32 v18, v16
v_mov_b32 v19, v16
""")
for j in range(4): e(f"ds_write_b128 v1, v[16:19] offset:{1024*j}")
lab("L_G_TDONE")
srd(dTMP, kDBG, 256)
srd(dW2, kW2, 1792*1024); srd(dWO, kWO, 512*1024); srd(dOUT, kOUT, 2048*1024)
e("s_waitcnt lgkmcnt(0)")
bar()
stamp("G", "bar0")
def g_reads(sg):
    u, s = sg >> 2, sg & 3
    a, base = tr_addr(u)
    out = []
    for i in range(3):
        for q in range(2):
            out.append(f"ds_read_b64_tr_b16 {vr(WF+12*(sg%3)+4*i+2*q,2)}, v{a} offset:{base + s*3072 + i*1024 + q*256}")
    out.append(f"ds_read_b128 {vr(XR+4*sg,4)}, v{vXa+s} offset:{x_base(u)[1]}")
    return out
vEp = 125
def tb_read(sg): return f"ds_read_b128 {vr(TF+4*(sg&1),4)}, v{vTb} offset:{64*sg}"
for r in g_reads(0) + [tb_read(0)] + g_reads(1): e(r)
for sg in range(32):
    nx = sg + 2
    if nx % 4 == 0:
        if sg == 26:
            e(f"s_waitcnt vmcnt(0)\nv_readfirstlane_b32 s{sEP}, v{vEp}\ns_nop 0\ns_cmp_eq_u32 s{sEP}, 0\ns_cbranch_scc1 L_G_EPSPIN")
            lab("L_G_EPOK")
            e(f"v_mov_b32 v1, {EPO}\nds_write_b32 v1, v{vEp}")
        e("s_waitcnt lgkmcnt(0)"); bar()
        if nx < 32:
            d, _ = x_base(nx >> 2)
            if d:
                for s in range(4): e(f"v_add_u32 v{vXa+s}, {hx(d)}, v{vXa+s}")
    else:
        e(f"s_waitcnt lgkmcnt({7 if sg < 31 else 0})")
    if sg == 13:
        e(f"s_nop 0\nv_mov_b32 v1, 0\nbuffer_load_dword v{vEp}, v1, {sr(dTMP,4)}, 0 offen sc1")
    rd = ([tb_read(sg+1)] if sg < 31 else []) + (g_reads(nx) if nx < 32 else [])
    x = XR + 4*sg
    extra = [f"v_mfma_f32_4x4x4_16b_bf16 {vr(SSA,4)}, {vr(x,2)}, {vr(x,2)}, {vr(SSA,4)}",
             f"v_mfma_f32_16x16x32_bf16 {vr(SACC,4)}, {vr(TF+4*(sg&1),4)}, {vr(x,4)}, {vr(SACC,4)}",
             f"v_mfma_f32_4x4x4_16b_bf16 {vr(SSB,4)}, {vr(x+2,2)}, {vr(x+2,2)}, {vr(SSB,4)}"]
    for i in range(3):
        c = vr(ACC+16*i, 16) if sg else "0"
        e(f"v_mfma_f32_32x32x16_bf16 {vr(ACC+16*i,16)}, {vr(WF+12*(sg%3)+4*i,4)}, {vr(x,4)}, {c}")
        for r in rd[(0,3,6)[i]:(3,6,8)[i]]: e(r)
        e(extra[i])
stamp("G", "ph1_end")
for i in range(3):
    e(f"""
s_mul_i32 s{t0}, s{sCG}, 3
s_add_u32 s{t0}, s{t0}, {i}
s_lshr_b32 s{t1}, s{t0}, 4
s_and_b32 s{t0}, s{t0}, 15
s_lshl_b32 s{t0}, s{t0}, 17
s_lshl_b32 s{t2}, s{t1}, 21
s_add_u32 s{t0}, s{t0}, s{t2}
s_lshl_b32 s{t2}, s{sTT}, 2
s_add_u32 s{t2}, s{t2}, s{sW}
s_lshl_b32 s{t2}, s{t2}, 10
s_add_u32 s{t0}, s{t0}, s{t2}
s_add_u32 s{t2}, s{t0}, 65536
s_cmp_eq_u32 s{t1}, 2
s_cselect_b64 s[{t5}:{t5+1}], -1, 0
v_cndmask_b32 v{1+i}, v{vL16}, v{vLV}, s[{t5}:{t5+1}]
s_cmp_eq_u32 s{t1}, 0
s_cbranch_scc0 L_G_NOS{i}
s_mov_b32 s{t1}, {hx(f2u(QSCALE))}
""")
    for j in range(16): e(f"v_mul_f32 v{ACC+16*i+j}, s{t1}, v{ACC+16*i+j}")
    lab(f"L_G_NOS{i}")
    for j in range(8): e(f"v_cvt_pk_bf16_f32 v{WF+8*i+j}, v{ACC+16*i+2*j}, v{ACC+16*i+2*j+1}")
    e(f"buffer_store_dwordx4 {vr(WF+8*i,4)}, v{1+i}, {sr(dWS,4)}, s{t0} offen {SC}")
    e(f"buffer_store_dwordx4 {vr(WF+8*i+4,4)}, v{1+i}, {sr(dWS,4)}, s{t2} offen {SC}")
e(f"""
v_add_f32 v{SSA}, v{SSA}, v{SSB}
v_add_f32 v{SSA+1}, v{SSA+1}, v{SSB+1}
v_add_f32 v{SSA+2}, v{SSA+2}, v{SSB+2}
v_add_f32 v{SSA+3}, v{SSA+3}, v{SSB+3}
v_and_b32 v16, 1, v0
v_and_b32 v17, 2, v0
v_cmp_eq_u32 vcc, 0, v16
v_cmp_eq_u32 s[{t5}:{t5+1}], 0, v17
v_permlane16_swap_b32 v{SACC}, v{SACC+1}
v_permlane16_swap_b32 v{SACC+2}, v{SACC+3}
v_cndmask_b32 v{SSA}, v{SSA+1}, v{SSA}, vcc
v_cndmask_b32 v{SSA+2}, v{SSA+3}, v{SSA+2}, vcc
v_mov_b32 v{SACC+1}, v{SACC}
v_mov_b32 v{SACC+3}, v{SACC+2}
v_cndmask_b32 v{SSA}, v{SSA+2}, v{SSA}, s[{t5}:{t5+1}]
v_mov_b32 v{SSB}, v{SSA}
v_permlane32_swap_b32 v{SACC}, v{SACC+1}
v_permlane32_swap_b32 v{SACC+2}, v{SACC+3}
v_permlane32_swap_b32 v{SSA}, v{SSB}
v_mul_f32 v{SACC}, {hx(f2u(1/512))}, v{SACC}
v_mul_f32 v{SACC+2}, {hx(f2u(-LOG2E))}, v{SACC+2}
v_add_f32 v{SSA}, v{SSA}, v{SSB}
v_exp_f32 v{SACC+2}, v{SACC+2}
v_mul_f32 v{SSA}, {hx(f2u(1/512))}, v{SSA}
v_fma_f32 v{SSA}, -v{SACC}, v{SACC}, v{SSA}
v_add_f32 v{SACC+2}, 1.0, v{SACC+2}
v_max_f32 v{SSA}, 0, v{SSA}
v_add_f32 v{SSA}, {hx(f2u(1e-5))}, v{SSA}
v_rcp_f32 v{SACC+2}, v{SACC+2}
v_rsq_f32 v{vRstd}, v{SSA}
v_and_b32 v16, 31, v0
v_lshlrev_b32 v17, 3, v16
v_mul_f32 v{vAm}, -v{SACC}, v{vRstd}
s_lshl_b32 s{t0}, s{sW}, 8
s_add_u32 s{t0}, s{t0}, {STAT}
v_add_u32 v17, s{t0}, v17
v_lshlrev_b32 v16, 2, v16
ds_write_b64 v17, v[{vRstd}:{vAm}]
s_lshl_b32 s{t0}, s{sCG}, 13
s_lshl_b32 s{t1}, s{sTT}, 9
s_add_u32 s{t0}, s{t0}, s{t1}
s_lshl_b32 s{t1}, s{sW}, 7
s_add_u32 s{t0}, s{t0}, s{t1}
s_add_u32 s{t0}, s{t0}, {WS_G}
buffer_store_dword v{SACC+2}, v16, {sr(dWS,4)}, s{t0} offen {SC}
""")
bar()
stamp("G", "bar9")
def flag_store(base, lbl):
    e(f"""
s_cmp_eq_u32 s{sW}, 0
s_cbranch_scc0 {lbl}
s_lshl_b32 s{t0}, s{sTT}, 4
s_add_u32 s{t0}, s{t0}, s{sCG}
s_lshl_b32 s{t0}, s{t0}, 6
s_add_u32 s{t0}, s{t0}, {base}
v_mov_b32 v1, s{sEP}
v_mov_b32 v2, 0
buffer_store_dword v1, v2, {sr(dWS,4)}, s{t0} offen sc1
""")
    lab(lbl)
e(f"""
s_mov_b32 s{sP0}, {P1}
s_mov_b32 s{sP1}, 0
s_call_b64 {sr(sRET,2)}, L_CSP
""")
stamp("G", "csp1")
e("s_waitcnt vmcnt(0) lgkmcnt(0)")
stamp("G", "stwait")
bar()
flag_store(WS_F1, "L_G_NF1")
stamp("G", "bar10")
e(f"v_add_u32 v{vTile}, {P1}, v{vTrW1}\ns_call_b64 {sr(sRET,2)}, L_TILE")
stamp("G", "tile_a")
bar()
stamp("G", "bar11")
e(f"s_mov_b32 s{sP0}, 0\ns_call_b64 {sr(sRET,2)}, L_EPI")
stamp("G", "epi_a")
h_store(f"s_mov_b32 s{t0}, s{sC1}")
e(f"""
s_mov_b32 s{sP0}, {P2}
s_mov_b32 s{sP1}, 256
s_call_b64 {sr(sRET,2)}, L_CSP
s_waitcnt lgkmcnt(0)
""")
stamp("G", "csp2")
bar()
stamp("G", "bar12")
e(f"""
s_cmp_eq_u32 s{sFG}, 0
s_cbranch_scc1 L_G_NOC1
v_add_u32 v{vTile}, {P2}, v{vTrW1}
s_call_b64 {sr(sRET,2)}, L_TILE
""")
lab("L_G_NOC1")
bar()
stamp("G", "bar13")
e(f"s_mov_b32 s{sP0}, {R1}\ns_mov_b32 s{sP1}, 32\ns_call_b64 {sr(sRET,2)}, L_DMAKV")
e(f"""
s_cmp_eq_u32 s{sFG}, 0
s_cbranch_scc1 L_G_NOC2
s_setprio 2
s_mov_b32 s{sP0}, 256
s_call_b64 {sr(sRET,2)}, L_EPI
""")
h_store(f"s_mov_b32 s{t0}, s{sC2}")
lab("L_G_NOC2")
e("s_setprio 0\ns_waitcnt vmcnt(0)")
bar()
flag_store(WS_F2, "L_G_NF2")
if OPT["stop"] == 1:
    e("s_branch L_END")
GA, GW, GH = 16, 80, 96
if OPT["prof"]: e("v_mov_b32 v15, v124"); stamp_reg["G"] = 15
vD0, vD1, vA0, vA1, vH0, vH1, vOm0, vOm1 = 4, 5, 6, 7, 8, 9, 10, 11
sKD, sKH, sRG, sE = 74, 75, 76, 77
e(f"""
s_lshr_b32 s{t0}, s{sT64}, 1
s_lshl_b32 s{t0}, s{t0}, 10
s_add_u32 s{t0}, s{t0}, {WS_F2}
v_and_b32 v1, 15, v0
v_lshlrev_b32 v1, 6, v1
v_add_u32 v3, s{t0}, v1
v_lshrrev_b32 v1, 3, v0
v_bfe_u32 v2, v0, 4, 1
v_lshlrev_b32 v2, 2, v2
v_xor_b32 v2, v2, v0
v_and_b32 v2, 7, v2
v_lshlrev_b32 v2, 4, v2
v_lshl_add_u32 v{vD0}, v1, 10, v2
v_add_u32 v{vD1}, 7168, v{vD0}
v_lshrrev_b32 v1, 5, v0
v_lshlrev_b32 v1, 10, v1
v_bfe_u32 v2, v0, 2, 2
v_lshl_add_u32 v1, v2, 7, v1
v_bfe_u32 v2, v0, 4, 1
v_lshl_add_u32 v1, v2, 5, v1
v_and_b32 v2, 1, v0
v_lshl_add_u32 v1, v2, 4, v1
v_bfe_u32 v2, v0, 1, 1
v_lshl_add_u32 v1, v2, 3, v1
v_bfe_u32 v2, v0, 3, 1
v_lshlrev_b32 v2, 6, v2
v_xor_b32 v1, v1, v2
s_lshl_b32 s{sRG}, s{sW}, 12
s_add_u32 s{sRG}, s{sRG}, {RING}
s_and_b32 s{t0}, s{sW}, 1
s_lshl_b32 s{t0}, s{t0}, 6
v_xor_b32 v1, s{t0}, v1
v_add_u32 v{vA0}, s{sRG}, v1
v_xor_b32 v{vA1}, 64, v{vA0}
s_lshr_b32 s{t0}, s{sW}, 1
s_mul_i32 s{t1}, s{t0}, 114688
s_sub_u32 s{t2}, 114688, s{t1}
v_add_u32 v{vH0}, s{t1}, v{vL16}
v_add_u32 v{vH1}, s{t2}, v{vL16}
s_mul_i32 s{sKD}, s{sW}, {28*16384}
s_lshl_b32 s{t1}, s{sCT}, 7
s_add_u32 s{sKD}, s{sKD}, s{t1}
s_mul_i32 s{sKH}, s{sT64}, 229376
s_mul_i32 s{t1}, s{sW}, {28*1024}
s_add_u32 s{sKH}, s{sKH}, s{t1}
s_add_u32 s{sKH}, s{sKH}, {WS_H}
v_and_b32 v1, 31, v0
v_lshlrev_b32 v1, 2, v1
s_lshl_b32 s{t0}, s{t0}, 7
v_add_u32 v2, s{t0}, v1
v_xor_b32 v1, 0x80, v2
""")
stamp("G", "pre_p2")
poll("L_P2", 3)
stamp("G", "poll2")
e(f"""
s_lshl_b32 s{t0}, s{sT64}, 8
s_add_u32 s{t0}, s{t0}, {WS_G}
buffer_load_dword v{vOm0}, v2, {sr(dWS,4)}, s{t0} offen {SC}
buffer_load_dword v{vOm1}, v1, {sr(dWS,4)}, s{t0} offen {SC}
""")
def g2_issue(slot, hbuf, ekd, ekh):
    e(f"""
s_add_u32 m0, s{sRG}, {2048*slot}
s_nop 0
buffer_load_dwordx4 v{vD0}, {sr(dW2,4)}, s{ekd} offen lds
buffer_load_dwordx4 v{vD1}, {sr(dW2,4)}, s{ekd} offen offset:1024 lds
buffer_load_dwordx4 {vr(GH+8*hbuf,4)}, v{vH0}, {sr(dWS,4)}, s{ekh} offen {SC}
buffer_load_dwordx4 {vr(GH+8*hbuf+4,4)}, v{vH1}, {sr(dWS,4)}, s{ekh} offen {SC}
""")
def g2_tr(dst, slot):
    return [f"ds_read_b64_tr_b16 {vr(dst+4*a+2*q,2)}, v{vA0+a} offset:{2048*slot + 512*q}" for a in range(2) for q in range(2)]
g2_issue(0, 0, sKD, sKH)
e(f"s_add_u32 s{t0}, s{sKD}, 16384\ns_add_u32 s{t1}, s{sKH}, 1024")
g2_issue(1, 1, t0, t1)
e("s_waitcnt vmcnt(6)")
for r in g2_tr(GW, 0): e(r)
e(f"s_add_u32 s{t0}, s{sKD}, 32768\ns_add_u32 s{t1}, s{sKH}, 2048\ns_waitcnt lgkmcnt(0)")
g2_issue(0, 2, t0, t1)
for i in range(64): e(f"v_mov_b32 v{GA+i}, 0")
e(f"s_mov_b32 s{sE}, 3")
lab("L_G2")
for k in range(4):
    e("s_waitcnt vmcnt(6)")
    rd = g2_tr(GW + 8*((k+1)&1), (k+1)&1)
    for i in range(4):
        a, b = i & 1, i >> 1
        e(f"v_mfma_f32_32x32x16_bf16 {vr(GA+16*i,16)}, {vr(GW+8*(k&1)+4*a,4)}, {vr(GH+8*k+4*b,4)}, {vr(GA+16*i,16)}")
        if i == 0:
            for r in rd: e(r)
    e(f"""
s_min_u32 s{t2}, s{sE}, 27
s_lshl_b32 s{t0}, s{t2}, 14
s_add_u32 s{t0}, s{t0}, s{sKD}
s_lshl_b32 s{t1}, s{t2}, 10
s_add_u32 s{t1}, s{t1}, s{sKH}
s_add_u32 s{sE}, s{sE}, 1
s_waitcnt lgkmcnt(0)
""")
    g2_issue((k+1)&1, (k+3)&3, t0, t1)
e(f"s_cmp_lt_u32 s{sE}, 31\ns_cbranch_scc1 L_G2")
stamp("G", "g2_end")
WOR, OR = 128, 192
e(f"""
s_waitcnt vmcnt(0)
v_sub_f32 v{vOm0}, 1.0, v{vOm0}
v_sub_f32 v{vOm1}, 1.0, v{vOm1}
s_lshl_b32 s{sKD}, s{sW}, 17
s_lshl_b32 s{t1}, s{sCT}, 7
s_add_u32 s{sKD}, s{sKD}, s{t1}
""")
def wo_issue(j):
    e(f"""
s_add_u32 m0, s{sRG}, {2048*(j&1)}
s_add_u32 s{t0}, s{sKD}, {16384*j}
buffer_load_dwordx4 v{vD0}, {sr(dWO,4)}, s{t0} offen lds
buffer_load_dwordx4 v{vD1}, {sr(dWO,4)}, s{t0} offen offset:1024 lds
""")
wo_issue(0); wo_issue(1)
for i in range(64): e(f"v_mul_f32 v{GA+i}, v{GA+i}, v{vOm0 if i < 32 else vOm1}")
for j in range(8):
    e(f"s_waitcnt vmcnt({2 if j < 7 else 0})")
    for r in g2_tr(WOR + 8*j, j & 1): e(r)
    if j + 2 < 8:
        e("s_waitcnt lgkmcnt(0)"); wo_issue(j + 2)
B2R = 80
e(f"""
s_and_b32 s{t0}, s{sW}, 1
s_lshl_b32 s{t0}, s{t0}, 7
s_add_u32 s{t0}, s{t0}, {B2T}
v_and_b32 v1, 32, v0
v_add_u32 v1, s{t0}, v1
ds_read_b128 {vr(B2R,4)}, v1
ds_read_b128 {vr(B2R+4,4)}, v1 offset:16
ds_read_b128 {vr(B2R+8,4)}, v1 offset:64
ds_read_b128 {vr(B2R+12,4)}, v1 offset:80
s_lshl_b32 s{t0}, s{sT64}, 5
s_lshl_b32 s{t1}, s{sW}, 3
s_add_u32 s{t0}, s{t0}, s{t1}
s_lshl_b32 s{t0}, s{t0}, 6
s_add_u32 s{t0}, s{t0}, {WS_F3}
v_and_b32 v1, 7, v0
v_lshlrev_b32 v1, 6, v1
v_add_u32 v3, s{t0}, v1
s_lshr_b32 s{t0}, s{sW}, 1
s_lshl_b32 s{t0}, s{t0}, 15
v_add_u32 v{vH0}, s{t0}, v{vL16}
v_xor_b32 v{vH1}, 0x8000, v{vH0}
s_lshl_b32 s{sKH}, s{sT64}, 16
s_lshl_b32 s{t1}, s{sW}, 13
s_add_u32 s{sKH}, s{sKH}, s{t1}
s_add_u32 s{sKH}, s{sKH}, {WS_O}
s_add_u32 s{sE}, s{sKH}, 4096
""")
for i in range(1, 4):
    e(f"s_xor_b32 s{t0}, s{sW}, {i}\ns_mul_i32 s{t0}, s{t0}, 12288\ns_add_u32 s{t0}, s{t0}, {4096*(i-1)}\nv_add_u32 v{95+i}, s{t0}, v{vL16}")
e(f"""
s_mul_i32 s{t0}, s{sW}, 12288
v_add_u32 v99, s{t0}, v{vL16}
v_and_b32 v1, 31, v0
v_lshlrev_b32 v1, 10, v1
v_lshrrev_b32 v2, 5, v0
v_lshl_add_u32 v12, v2, 4, v1
s_lshl_b32 s{sKD}, s{sT64}, 16
s_lshr_b32 s{t0}, s{sW}, 1
s_lshl_b32 s{t0}, s{t0}, 15
s_add_u32 s{sKD}, s{sKD}, s{t0}
s_lshl_b32 s{t0}, s{sCT}, 7
s_add_u32 s{sKD}, s{sKD}, s{t0}
s_and_b32 s{t0}, s{sW}, 1
s_lshl_b32 s{t0}, s{t0}, 6
s_add_u32 s{sKD}, s{sKD}, s{t0}
s_waitcnt lgkmcnt(0)
""")
stamp("G", "pre_p3")
poll("L_P3", 3)
stamp("G", "poll3")
for j in range(8):
    for b in range(2):
        e(f"buffer_load_dwordx4 {vr(OR+8*j+4*b,4)}, v{vH0+b}, {sr(dWS,4)}, s{sKH if j < 4 else sE} offen offset:{1024*(j&3)} {SC}")
for j in range(8):
    e(f"s_waitcnt vmcnt({14-2*j})")
    for i in range(4):
        a, b = i & 1, i >> 1
        e(f"v_mfma_f32_32x32x16_bf16 {vr(GA+16*i,16)}, {vr(WOR+8*j+4*a,4)}, {vr(OR+8*j+4*b,4)}, {vr(GA+16*i,16)}")
bar()
e("s_nop 8")
for i in range(1, 4):
    for q in range(4): e(f"ds_write_b128 v{95+i}, {vr(GA+16*i+4*q,4)} offset:{1024*q}")
e("s_waitcnt lgkmcnt(0)")
bar()
for i in range(12): e(f"ds_read_b128 {vr(128+4*i,4)}, v99 offset:{1024*i}")
for i in range(16): e(f"v_fmac_f32 v{GA+i}, v{B2R+i}, v{vOm0}")
for s in range(3):
    e(f"s_waitcnt lgkmcnt({8-4*s})")
    for i in range(16): e(f"v_add_f32 v{GA+i}, v{GA+i}, v{128+16*s+i}")
for i in range(8): e(f"v_cvt_pk_bf16_f32 v{32+i}, v{GA+2*i}, v{GA+2*i+1}")
e(f"buffer_store_dwordx4 v[32:35], v12, {sr(dOUT,4)}, s{sKD} offen")
e(f"buffer_store_dwordx4 v[36:39], v12, {sr(dOUT,4)}, s{sKD} offen offset:32")
stamp("G", "end")
dump_stamps("G")
lab("L_END")
e("s_endpgm")
lab("L_G_EPSPIN")
e(f"s_mov_b32 s{sTO}, 100000\nv_mov_b32 v1, 0")
lab("L_G_EPSPIN2")
e(f"""
buffer_load_dword v{vEp}, v1, {sr(dTMP,4)}, 0 offen sc1
s_waitcnt vmcnt(0)
v_readfirstlane_b32 s{sEP}, v{vEp}
s_sub_u32 s{sTO}, s{sTO}, 1
s_cbranch_scc1 L_G_EPOK
s_cmp_eq_u32 s{sEP}, 0
s_cbranch_scc1 L_G_EPSPIN2
s_branch L_G_EPOK
""")
lab("L_DMAPAIR")
e(f"""
s_lshl_b32 s{t0}, s{sP2}, 2
s_add_u32 s{t0}, s{t0}, s{sW}
s_lshl_b32 s{t1}, s{t0}, 10
s_add_u32 s{sP0}, s{sP0}, s{t1}
s_lshl_b32 s{t1}, s{sROT}, 2
s_add_u32 s{t0}, s{t0}, s{t1}
""")
for k in range(4):
    e(f"""
s_and_b32 s{t0}, s{t0}, 31
s_mul_i32 s{t1}, s{t0}, 57344
s_add_u32 m0, s{sP0}, {4096*k}
s_add_u32 s{t1}, s{t1}, s{sP1}
buffer_load_dwordx4 v{vW1}, {sr(dW1,4)}, s{t1} offen lds
s_add_u32 m0, s{sP0}, {4096*k + 32704}
s_add_u32 s{t0}, s{t0}, 4
buffer_load_dwordx4 v{vW1}, {sr(dW1,4)}, s{t1} offen offset:64 lds
""")
e(f"s_setpc_b64 {sr(sRET,2)}")
lab("L_DMAKV")
e(f"""
s_lshl_b32 s{t0}, s{sW}, 11
s_add_u32 s{sP0}, s{sP0}, s{t0}
s_lshl_b32 s{t1}, s{sHD}, 16
s_add_u32 s{t1}, s{t1}, s{t0}
s_lshl_b32 s{t0}, s{sQB}, 3
s_add_u32 s{t0}, s{t0}, s{sP1}
""")
for g in range(4):
    e(f"s_and_b32 s{t0}, s{t0}, 63\ns_lshl_b32 s{t2}, s{t0}, 10\ns_add_u32 s{t2}, s{t2}, s{t1}\ns_add_u32 s{t0}, s{t0}, 8")
    for kv in range(2):
        e(f"s_add_u32 m0, s{sP0}, {32768*kv + 8192*g}\ns_add_u32 s{t3}, s{t2}, {WS_V if kv else WS_K}")
        for j in range(2):
            e(f"buffer_load_dwordx4 v{vL16}, {sr(dWS,4)}, s{t3} offen offset:{1024*j} {SC} lds")
e(f"s_setpc_b64 {sr(sRET,2)}")
def t_reads(s): return [f"ds_read_b64_tr_b16 {vr(WF+4*(s%3)+2*q,2)}, v{vTile} offset:{1024*s + 256*q}" for q in range(2)]
def tile_routine(name, stream):
    lab(name)
    e("s_setprio 2")
    for r in t_reads(0) + t_reads(1): e(r)
    for s in range(32):
        e(f"s_waitcnt lgkmcnt({2 if s < 31 else 0})")
        e(f"v_mfma_f32_32x32x16_bf16 {vr(ACC,16)}, {vr(WF+4*(s%3),4)}, {vr(XR+4*s,4)}, {vr(ACC,16) if s else 0}")
        pre, post = [], []
        if stream == "W" and s % 2 == 0:
            ee, b = s >> 2, (s >> 1) & 1
            pre = [f"s_add_u32 m0, s{sGM}, {4096*ee + 32704*b}"]
            if b == 0: pre += [f"s_mul_i32 s{sGC}, s{sGS2}, 57344", f"s_add_u32 s{sGC}, s{sGC}, s{sGST}"]
            post = [f"buffer_load_dwordx4 v{vW1}, {sr(dW1,4)}, s{sGC} offen offset:{64*b} lds"]
            if b: post += [f"s_add_u32 s{sGS2}, s{sGS2}, 4", f"s_and_b32 s{sGS2}, s{sGS2}, 31"]
        if stream == "K" and s % 2 == 0:
            i = s >> 1
            g, kv, j = i >> 2, (i >> 1) & 1, i & 1
            if j == 0:
                pre = [f"s_add_u32 m0, s{sGM}, {32768*kv + 8192*g}"]
                if kv == 0: pre += [f"s_and_b32 s{sGS2}, s{sGS2}, 63", f"s_lshl_b32 s{t1}, s{sGS2}, 10", f"s_add_u32 s{t1}, s{t1}, s{sGC}", f"s_add_u32 s{sGS2}, s{sGS2}, 8"]
                pre += [f"s_add_u32 s{t0}, s{t1}, {WS_V if kv else WS_K}"]
            post = [f"buffer_load_dwordx4 v{vL16}, {sr(dWS,4)}, s{t0} offen offset:{1024*j} {SC} lds"]
        for r in pre: e(r)
        if s + 2 < 32:
            for r in t_reads(s + 2): e(r)
        elif pre and post: e("s_nop 0")
        for r in post: e(r)
    e(f"s_setprio 0\ns_setpc_b64 {sr(sRET,2)}")
tile_routine("L_TILE", None); tile_routine("L_TILEW", "W"); tile_routine("L_TILEK", "K")
lab("L_EPI")
e(f"v_add_u32 v3, s{sP0}, v{vT}")
QO = (0, 16, 64, 80)
for q in range(4):
    e(f"ds_read_b128 {vr(32+4*q,4)}, v3 offset:{QO[q]}\nds_read_b128 {vr(48+4*q,4)}, v3 offset:{QO[q]+B1T-CS}")
e(f"s_mov_b32 s{t0}, {hx(f2u(GC2))}\ns_nop 0")
for q in range(2):
    e(f"s_waitcnt lgkmcnt({4-4*q})")
    R = range(8*q, 8*q + 8)
    for i in R: e(f"v_fma_f32 v{48+i}, v{32+i}, v{vAm}, v{48+i}")
    for i in R: e(f"v_fma_f32 v{ACC+i}, v{ACC+i}, v{vRstd}, v{48+i}")
    for i in R: e(f"v_mul_f32 v{32+i}, v{ACC+i}, v{ACC+i}")
    for i in R: e(f"v_fma_f32 v{32+i}, v{32+i}, s{t0}, v{vC1}")
    for i in R: e(f"v_mul_f32 v{32+i}, v{32+i}, v{ACC+i}")
    for i in R: e(f"v_exp_f32 v{32+i}, v{32+i}")
    for i in R: e(f"v_add_f32 v{32+i}, 1.0, v{32+i}")
    for i in R: e(f"v_rcp_f32 v{32+i}, v{32+i}")
    for i in R: e(f"v_mul_f32 v{ACC+i}, v{ACC+i}, v{32+i}")
    for i in range(4): e(f"v_cvt_pk_bf16_f32 v{PK+4*q+i}, v{ACC+8*q+2*i}, v{ACC+8*q+2*i+1}")
e(f"s_setpc_b64 {sr(sRET,2)}")
lab("L_CSP")
e(f"""
s_lshl_b32 s{t0}, s{sW}, 13
s_add_u32 s{t0}, s{t0}, s{sP0}
v_add_u32 v3, s{t0}, v{vTrW1}
""")
def cs_reads(g):
    return [f"ds_read_b64_tr_b16 {vr(32+16*(g&1)+2*q,2)}, v3 offset:{32768*(g>>1) + 4096*(g&1) + 1024*(q>>1) + 256*(q&1)}" for q in range(8)]
for r in cs_reads(0): e(r)
e(f"""
v_and_b32 v76, 15, v0
v_bfe_u32 v77, v0, 4, 1
v_cmp_eq_u32 vcc, v76, v77
v_mov_b32 v77, 0x3f803f80
v_mov_b32 v76, 0
v_cndmask_b32 v76, v76, v77, vcc
v_mov_b32 v77, v76
v_mov_b32 v78, v76
v_mov_b32 v79, v76
""")
for g in range(4):
    e("s_waitcnt lgkmcnt(0)")
    if OPT["prof"] == 4: e(f"s_memtime s[{t5}:{t5+1}]\ns_add_u32 m0, s{sP1}, {32+g}\ns_waitcnt lgkmcnt(0)\nv_writelane_b32 v124, s{t5}, m0")
    if g < 3:
        for r in cs_reads(g + 1): e(r)
    d = 80 + 4*(g >> 1)
    for i in range(4): e(f"v_mfma_f32_16x16x32_bf16 {vr(d,4)}, v[76:79], {vr(32+16*(g&1)+4*i,4)}, {vr(d,4) if (g&1 or i) else 0}")
e(f"""
v_add_u32 v3, s{sP1}, v{vCsA}
s_nop 6
{f's_memtime s[{t5}:{t5+1}]' if OPT["prof"] == 4 else ''}
{f's_add_u32 m0, s{sP1}, 36' if OPT["prof"] == 4 else ''}
{f's_waitcnt lgkmcnt(0)' if OPT["prof"] == 4 else ''}
{f'v_writelane_b32 v124, s{t5}, m0' if OPT["prof"] == 4 else ''}
s_mov_b64 exec, 0xffff
ds_add_f32 v3, v80
ds_add_f32 v3, v81 offset:64
ds_add_f32 v3, v84 offset:128
ds_add_f32 v3, v85 offset:192
s_mov_b64 exec, -1
s_setpc_b64 {sr(sRET,2)}
""")
lab("L_CODE_END")
e(f".set CODE_SPAN, L_CODE_END - {KN}")
e(f"""
.section .rodata,"a"
.p2align 6
.amdhsa_kernel {KN}
  .amdhsa_next_free_vgpr 256
  .amdhsa_next_free_sgpr 102
  .amdhsa_accum_offset 256
  .amdhsa_group_segment_fixed_size 0
  .amdhsa_kernarg_size 96
  .amdhsa_user_sgpr_count 2
  .amdhsa_user_sgpr_kernarg_segment_ptr 1
  .amdhsa_system_sgpr_workgroup_id_x 1
  .amdhsa_float_denorm_mode_32 3
.end_amdhsa_kernel
""")
errs = hazard.check(L)
for x in errs: print("HAZARD", x, file=sys.stderr)
out = sys.argv[1] if len(sys.argv) > 1 else "cdna_kernels/" + NAME + ".s"
open(out, "w").write("\n".join(L) + "\n")
import json; json.dump(stamp_names, open(out + ".json", "w"))
print("wrote", out, len(L), "lines;", len(errs), "hazards")
```

```python
import sys, math, struct
import hazard
NAME = "gated_mix__mha_block__mixer_channel_mlp__prompt"
KN = NAME + "_kernel"

OPT = dict(prof=0, stop=0, codepf=0, sc="sc1")
for a in sys.argv[2:]:
    k, v = a.split("="); OPT[k] = int(v) if v.lstrip("-").isdigit() else v
SC = OPT["sc"]

L = []
def e(s):
    for x in s.strip("\n").split("\n"): L.append(x)
def lab(n): L.append(n + ":")
def vr(a, n=1): return f"v{a}" if n == 1 else f"v[{a}:{a+n-1}]"
def sr(a, n=1): return f"s{a}" if n == 1 else f"s[{a}:{a+n-1}]"
def f2u(x): return struct.unpack("<I", struct.pack("<f", x))[0]
def hx(x): return f"0x{x & 0xffffffff:x}"

SLOTS = [0, 28672, 57344, 86016, 114688]
SLOT = [SLOTS[i] for i in (0, 1, 2, 3, 4, 0, 1, 2)]
P1, P2, RING, ONES = 86016, 0, 65536, 151552
TBL, CS, B1T, B2T, STAT, EPO = 155648, 157696, 158208, 158720, 158976, 160000
R0, R1 = P1, P2
LDS_SIZE = 163840
MB = 1 << 20
WS_Q, WS_K, WS_V, WS_H, WS_O, WS_G = 0, 2*MB, 4*MB, 8*MB, 16*MB, 18*MB
WS_F1, WS_F2, WS_F3, WS_EP, WS_PROF, WS_SIZE = 19*MB, 19*MB + 65536, 19*MB + 131072, 19*MB + 262144, 20*MB, 24*MB
sB, sW8, sW, sTT, sCG, sROT = 2, 3, 4, 5, 6, 7
dX, dWQ, dW1, dW2, dWO, dWS, dOUT, dTMP = 8, 12, 16, 20, 24, 28, 32, 36
kX, kWQ, kWO, kW1, kB1, kW2, kB2, kGW, kOUT, kDBG, kWS = 40, 42, 44, 48, 50, 52, 54, 56, 58, 60, 62
sEP = 64
t0, t1, t2, t3, t4, t5 = 65, 66, 67, 68, 69, 70
sRET = 72
sXb, sWb, sLx, sLw = 74, 75, 76, 77
sC1, sC2, sFG, sFA = 78, 79, 80, 81
sHD, sQB, sT64, sCT = 82, 83, 84, 85
sI, sBARI, sINC, sPASS, sTO = 86, 87, 88, 89, 46
sP0, sP1, sP2 = 47, 74, 75
nstamp_role = {}
stamp_reg = {"A": 15, "G": 124}
stamp_names = {"A": [], "G": []}
def stamp(role, name=""):
    if not OPT["prof"]: return
    i = len(stamp_names[role])
    stamp_names[role].append(name)
    e(f"s_memtime s[{t5}:{t5+1}]\ns_waitcnt lgkmcnt(0)\nv_writelane_b32 v{stamp_reg[role]}, s{t5}, {i}")
def stamp_entry(role):
    if not OPT["prof"]: return
    stamp_names[role].append("entry")
    e(f"v_writelane_b32 v{stamp_reg[role]}, s90, 0")
def dump_stamps(role):
    if not OPT["prof"]: return
    e(f"""
s_memrealtime s[{t5}:{t5+1}]
s_waitcnt lgkmcnt(0)
v_writelane_b32 v{stamp_reg[role]}, s{t5}, 63
v_writelane_b32 v{stamp_reg[role]}, s92, 62
s_lshl_b32 s{t0}, s{sB}, 3
s_add_u32 s{t0}, s{t0}, s{sW8}
s_lshl_b32 s{t0}, s{t0}, 8
s_add_u32 s{t0}, s{t0}, {WS_PROF}
v_lshlrev_b32 v1, 2, v0
buffer_store_dword v{stamp_reg[role]}, v1, {sr(dWS,4)}, s{t0} offen
""")
def srd(d, k, size):
    e(f"s_mov_b32 s{d}, s{k}\ns_and_b32 s{d+1}, s{k+1}, 0xffff\ns_mov_b32 s{d+2}, {hx(size)}\ns_mov_b32 s{d+3}, 0x20000")
def bar(): e("s_barrier")

vLane = 0
vXa = 4
vTr = 8
vTile = 11
vRstd, vAm = 12, 13
vL16, vLV = 14, 15
ACC = 16
WF = 64
vT, vC1, vTrW1, vCsA = 100, 101, 102, 103
PK = 104
vX0, vW, vW1, vTb, vPoll = 112, 116, 117, 126, 119
vGa, vGb = 1, 2
vQ = 120
XR = 128
SX, SY, OA, OB, CA, CB, KB, VB, vIDX, vK, vV, vMask = 128, 144, 160, 176, 192, 208, 224, 232, 248, 249, 250, 251
TF, SACC, SSA, SSB = 104, 112, 116, 120
dG, sGM, sGC, sGS2, sGST, sGB = 92, 96, 97, 98, 99, 100
LOG2E = 1.4426950408889634
QSCALE = 0.25 * LOG2E
GC1 = -2.0 * math.sqrt(2.0 / math.pi) * LOG2E
GC2 = GC1 * 0.044715

def poll(name, vaddr, first_issued=False):
    e(f"s_mov_b32 s{sTO}, 100000")
    if not first_issued:
        e(f"buffer_load_dword v{vPoll}, v{vaddr}, {sr(dWS,4)}, 0 offen sc1")
    lab(name)
    e(f"""
s_waitcnt vmcnt(0)
v_cmp_ne_u32 vcc, s{sEP}, v{vPoll}
s_cbranch_vccz {name}_ok
s_sub_u32 s{sTO}, s{sTO}, 1
s_cbranch_scc1 {name}_ok
buffer_load_dword v{vPoll}, v{vaddr}, {sr(dWS,4)}, 0 offen sc1
s_branch {name}
""")
    lab(name + "_ok")

def x_addr_calc():
    e(f"""
v_and_b32 v1, 31, v{vLane}
v_lshrrev_b32 v2, 5, v{vLane}
v_bfe_u32 v3, v{vLane}, 1, 3
v_xor_b32 v2, v2, v3
v_lshlrev_b32 v2, 4, v2
v_lshl_add_u32 v2, v1, 7, v2
s_lshl_b32 s{t0}, s{sW}, 12
v_add_u32 v{vXa}, s{t0}, v2
v_xor_b32 v{vXa+1}, 32, v{vXa}
v_xor_b32 v{vXa+2}, 64, v{vXa}
v_xor_b32 v{vXa+3}, 0x60, v{vXa}
""")
def x_base(u):
    hi = lambda uu: 65536 if SLOT[uu] >= 65536 else 0
    d = hi(u) - (hi(u-1) if u else 0)
    return d, SLOT[u] - hi(u)
def tr_addr(u):
    s = SLOT[u]
    if s < 57344: return vTr, s
    if s < 114688: return vTr + 1, s - 57344
    return vTr + 2, s - 114688

def pair_cols():
    e(f"""
s_lshr_b32 s{t0}, s{sCG}, 2
s_mul_i32 s{t0}, s{t0}, 14
s_and_b32 s{t1}, s{sCG}, 3
s_lshl_b32 s{t2}, s{t1}, 3
s_lshr_b32 s{t3}, 0x0a080400, s{t2}
s_and_b32 s{t3}, s{t3}, 0xff
s_add_u32 s{sC1}, s{t0}, s{t3}
s_lshr_b32 s{t3}, 0x0c060602, s{t2}
s_and_b32 s{t3}, s{t3}, 0xff
s_add_u32 s{sC2}, s{t0}, s{t3}
s_cmp_lg_u32 s{t1}, 2
s_cselect_b32 s{sFG}, 1, 0
s_cmp_lg_u32 s{t1}, 1
s_cselect_b32 s{sFA}, 1, 0
""")

def trw1_calc():
    e(f"""
v_lshrrev_b32 v1, 5, v{vLane}
v_lshlrev_b32 v1, 9, v1
v_bfe_u32 v2, v{vLane}, 2, 2
v_lshl_add_u32 v1, v2, 6, v1
v_bfe_u32 v2, v{vLane}, 4, 1
v_lshl_add_u32 v1, v2, 5, v1
v_and_b32 v2, 1, v{vLane}
v_lshl_add_u32 v3, v2, 4, v1
v_bfe_u32 v2, v{vLane}, 1, 1
v_lshl_add_u32 v{vTrW1}, v2, 3, v3
v_lshrrev_b32 v2, 5, v{vLane}
v_lshlrev_b32 v2, 5, v2
v_add_u32 v{vT}, {CS}, v2
v_mov_b32 v{vC1}, {hx(f2u(GC1))}
v_lshlrev_b32 v{vL16}, 4, v{vLane}
""")

e(f"""; fused gated mix: MHA block + channel MLP, one persistent launch of 256 workgroups
; @launch grid=(256,1,1) block=(512,1,1) lds={LDS_SIZE}
.amdgcn_target "amdgcn-amd-amdhsa--gfx950"
.text
.globl {KN}
.p2align 8
.type {KN},@function""")
lab(KN)
e(f"""
s_cmp_ge_u32 s{sB}, 256
s_cbranch_scc1 L_END
{'s_memtime s[90:91]' if OPT['prof'] else ''}
{'s_memrealtime s[92:93]' if OPT['prof'] else ''}
s_load_dwordx8 s[40:47], s[0:1], 0
s_load_dwordx8 s[48:55], s[0:1], 32
s_load_dwordx8 s[56:63], s[0:1], 64
v_lshrrev_b32 v1, 6, v0
v_and_b32 v0, 63, v0
s_and_b32 s{t0}, s{sB}, 7
v_readfirstlane_b32 s{sW8}, v1
s_lshr_b32 s{t1}, s{sB}, 3
s_and_b32 s{t2}, s{t0}, 1
s_lshl_b32 s{t2}, s{t2}, 3
s_and_b32 s{sQB}, s{t1}, 7
s_add_u32 s{sTT}, s{t2}, s{sQB}
s_lshr_b32 s{t2}, s{t0}, 1
s_lshl_b32 s{t2}, s{t2}, 2
s_lshr_b32 s{t3}, s{t1}, 3
s_add_u32 s{sCG}, s{t2}, s{t3}
s_lshl_b32 s{t2}, s{t3}, 1
s_add_u32 s{sROT}, s{sTT}, s{t2}
s_and_b32 s{sROT}, s{sROT}, 7
s_lshl_b32 s{t0}, s{t0}, 2
s_add_u32 s{sHD}, s{t0}, s{t3}
s_mov_b32 s{sT64}, s{sHD}
s_mov_b32 s{sCT}, s{sQB}
s_and_b32 s{sW}, s{sW8}, 3
s_cmp_ge_u32 s{sW8}, 4
s_cbranch_scc0 L_G
""")
e(f"""
v_lshrrev_b32 v1, 3, v0
v_lshrrev_b32 v2, 4, v0
v_xor_b32 v2, v2, v0
v_and_b32 v2, 7, v2
v_lshlrev_b32 v2, 4, v2
v_lshl_add_u32 v{vX0}, v1, 10, v2
v_xor_b32 v3, 64, v{vX0}
v_add_u32 v{vX0+1}, 7168, v3
v_add_u32 v{vX0+2}, 14336, v{vX0}
v_add_u32 v{vX0+3}, 21504, v3
v_lshrrev_b32 v1, 2, v0
v_and_b32 v2, 3, v0
v_lshlrev_b32 v2, 4, v2
v_mul_u32_u24 v3, 3072, v1
v_add_u32 v{vW}, v3, v2
v_mul_u32_u24 v3, 3584, v1
v_add_u32 v{vW1}, v3, v2
s_lshl_b32 s{sXb}, s{sTT}, 17
s_lshl_b32 s{t0}, s{sW}, 15
s_add_u32 s{sXb}, s{sXb}, s{t0}
s_mul_i32 s{sWb}, s{sW}, 49152
s_mul_i32 s{t0}, s{sCG}, 192
s_add_u32 s{sWb}, s{sWb}, s{t0}
s_lshl_b32 s{sLx}, s{sW}, 12
s_mul_i32 s{sLw}, s{sW}, 3072
s_add_u32 s{sLw}, s{sLw}, 16384
s_waitcnt lgkmcnt(0)
""")
stamp_entry("A")
srd(dX, kX, 2048*1024); srd(dWQ, kWQ, 512*3072)
def dma_unit(u):
    e(f"""
s_add_u32 s{t0}, s{sROT}, {u}
s_and_b32 s{t0}, s{t0}, 7
s_lshl_b32 s{t1}, s{t0}, 7
s_add_u32 s{t1}, s{t1}, s{sXb}
s_add_u32 m0, s{sLx}, {SLOT[u]}
s_mul_i32 s{t2}, s{t0}, 196608
""")
    for j in range(4):
        e(f"buffer_load_dwordx4 v{vX0+j}, {sr(dX,4)}, s{t1} offen offset:{1024*j} lds")
    e(f"""
s_add_u32 m0, s{sLw}, {SLOT[u]}
s_add_u32 s{t2}, s{t2}, s{sWb}
buffer_load_dwordx4 v{vW}, {sr(dWQ,4)}, s{t2} offen lds
s_add_u32 m0, m0, 960
s_nop 0
buffer_load_dwordx4 v{vW}, {sr(dWQ,4)}, s{t2} offen offset:64 lds
s_add_u32 m0, m0, 960
s_nop 0
buffer_load_dwordx4 v{vW}, {sr(dWQ,4)}, s{t2} offen offset:128 lds
""")
dma_unit(0); dma_unit(1)
stamp("A", "issued")
srd(dW1, kW1, 512*3584); srd(dWS, kWS, WS_SIZE)
x_addr_calc()
trw1_calc()
pair_cols()
e("s_waitcnt vmcnt(7)")
bar()
stamp("A", "bar0")
for u in range(8):
    d, imm = x_base(u)
    if d:
        for s in range(4): e(f"v_add_u32 v{vXa+s}, {hx(d)}, v{vXa+s}")
    for s in range(4):
        e(f"ds_read_b128 {vr(XR+4*(4*u+s),4)}, v{vXa+s} offset:{imm}")
    if u <= 5: dma_unit(u + 2)
    if u >= 6:
        e(f"s_mov_b32 s{sP0}, {P1}\ns_lshl_b32 s{sP1}, s{sC1}, 6\ns_mov_b32 s{sP2}, {4*(u-6)}\ns_call_b64 {sr(sRET,2)}, L_DMAPAIR")
    if u == 7:
        e(f"v_mov_b32 v1, {EPO}\nds_read_b32 v3, v1")
    if u < 7:
        if OPT["prof"] == 3: stamp("A", f"st{u}")
        e(f"s_waitcnt vmcnt({7 if u < 6 else 8}) lgkmcnt(0)")
        if OPT["prof"] == 3: stamp("A", f"vm{u+1}")
        bar()
        if OPT["prof"] == 3: stamp("A", f"b{u+1}")
e("s_waitcnt lgkmcnt(0)")
bar()
stamp("A", "ph1_end")
e(f"""
v_readfirstlane_b32 s{sEP}, v3
s_lshl_b32 s{sGM}, s{sW}, 10
s_add_u32 s{sGM}, s{sGM}, {P2}
s_lshl_b32 s{sGS2}, s{sROT}, 2
s_add_u32 s{sGS2}, s{sGS2}, s{sW}
s_lshl_b32 s{sGST}, s{sC2}, 6
s_waitcnt vmcnt(0)
""")
bar()
stamp("A", "bar9")
e(f"v_add_u32 v{vTile}, {P1+32768}, v{vTrW1}\ns_call_b64 {sr(sRET,2)}, L_TILEW")
stamp("A", "tile_b")
bar()
stamp("A", "bar10")
e(f"""
v_and_b32 v1, 31, v0
v_lshlrev_b32 v1, 3, v1
s_lshl_b32 s{t0}, s{sW}, 8
s_add_u32 s{t0}, s{t0}, {STAT}
v_add_u32 v1, s{t0}, v1
ds_read_b64 v[{vRstd}:{vAm}], v1
s_mov_b32 s{sP0}, 128
s_call_b64 {sr(sRET,2)}, L_EPI
""")
stamp("A", "epi_b")
e(f"""
s_lshr_b32 s{t0}, s{sHD}, 1
s_mul_i32 s{t1}, s{t0}, 0x5556
s_lshr_b32 s{sP2}, s{t1}, 16
s_add_u32 s{t1}, s{t0}, 16
s_mul_i32 s{t1}, s{t1}, 0x5556
s_lshr_b32 s{t1}, s{t1}, 16
s_add_u32 s{t2}, s{t0}, 32
s_mul_i32 s{t2}, s{t2}, 0x5556
s_lshr_b32 s{t2}, s{t2}, 16
s_lshl_b32 s{t3}, s{sQB}, 5
s_add_u32 s{t3}, s{t3}, s{sP2}
v_and_b32 v16, 15, v0
v_lshlrev_b32 v16, 4, v16
v_add_u32 v17, s{t1}, v16
v_add_u32 v18, s{t2}, v16
v_and_b32 v19, 1, v0
v_lshlrev_b32 v19, 4, v19
v_add_u32 v19, s{t3}, v19
v_cmp_gt_u32 vcc, 16, v0
s_nop 1
v_cndmask_b32 v17, v18, v17, vcc
v_cmp_gt_u32 vcc, 32, v0
s_nop 1
v_cndmask_b32 v17, v19, v17, vcc
v_lshlrev_b32 v17, 6, v17
v_add_u32 v{vTb}, {WS_F1}, v17
buffer_load_dword v{vPoll}, v{vTb}, {sr(dWS,4)}, 0 offen sc1
s_waitcnt vmcnt(1)
""")
bar()
stamp("A", "bar11")
poll("L_P1", vTb, first_issued=True)
stamp("A", "poll1")
e(f"""
s_lshl_b32 s{t0}, s{sHD}, 16
s_lshl_b32 s{t1}, s{sQB}, 13
s_add_u32 s{t0}, s{t0}, s{t1}
s_lshl_b32 s{t1}, s{sW}, 11
s_add_u32 s{t0}, s{t0}, s{t1}
buffer_load_dwordx4 {vr(vQ,4)}, v{vL16}, {sr(dWS,4)}, s{t0} offen {SC}
buffer_load_dwordx4 {vr(vQ+4,4)}, v{vL16}, {sr(dWS,4)}, s{t0} offen offset:1024 {SC}
s_lshl_b32 s{t0}, s{sP2}, 13
s_lshl_b32 s{t1}, s{sQB}, 10
s_add_u32 s{t0}, s{t0}, s{t1}
s_lshl_b32 s{t1}, s{sW}, 8
s_add_u32 s{t0}, s{t0}, s{t1}
s_add_u32 s{t0}, s{t0}, {WS_G}
v_and_b32 v16, 31, v0
v_lshlrev_b32 v16, 2, v16
buffer_load_dword v{vGa}, v16, {sr(dWS,4)}, s{t0} offen {SC}
buffer_load_dword v{vGb}, v16, {sr(dWS,4)}, s{t0} offen offset:128 {SC}
""")
def h_store(sTile_expr):
    e(sTile_expr)
    e(f"""
s_lshl_b32 s{t0}, s{t0}, 11
s_lshl_b32 s{t1}, s{sTT}, 2
s_add_u32 s{t1}, s{t1}, s{sW}
s_mul_i32 s{t1}, s{t1}, 114688
s_add_u32 s{t0}, s{t0}, s{t1}
s_add_u32 s{t0}, s{t0}, {WS_H}
buffer_store_dwordx4 {vr(PK,4)}, v{vL16}, {sr(dWS,4)}, s{t0} offen {SC}
buffer_store_dwordx4 {vr(PK+4,4)}, v{vL16}, {sr(dWS,4)}, s{t0} offen offset:1024 {SC}
""")
h_store(f"s_add_u32 s{t0}, s{sC1}, 1")
stamp("A", "kvissued")
e(f"""
s_cmp_eq_u32 s{sFA}, 0
s_cbranch_scc0 L_A_D1
s_mov_b32 s{sP0}, {R0}
s_mov_b32 s{sP1}, 0
s_call_b64 {sr(sRET,2)}, L_DMAKV
s_branch L_A_NOD1
""")
lab("L_A_D1")
e(f"""
s_lshl_b32 s{t0}, s{sW}, 11
s_add_u32 s{sGM}, s{t0}, {R0}
s_lshl_b32 s{sGC}, s{sHD}, 16
s_add_u32 s{sGC}, s{sGC}, s{t0}
s_lshl_b32 s{sGS2}, s{sQB}, 3
v_add_u32 v{vTile}, {P2+32768}, v{vTrW1}
s_call_b64 {sr(sRET,2)}, L_TILEK
""")
lab("L_A_NOD1")
stamp("A", "tile_d")
bar()
stamp("A", "bar12")
e(f"""
s_cmp_eq_u32 s{sFA}, 0
s_cbranch_scc1 L_A_NOD2
s_mov_b32 s{sP0}, 384
s_call_b64 {sr(sRET,2)}, L_EPI
""")
h_store(f"s_add_u32 s{t0}, s{sC2}, 1")
e("s_waitcnt vmcnt(2)\ns_branch L_A_NOD3")
lab("L_A_NOD2")
e("s_waitcnt vmcnt(0)")
lab("L_A_NOD3")
stamp("A", "epi_d")
bar()
stamp("A", "bar13")
e(f"""
s_setprio 1
s_mov_b32 s{sPASS}, 0
s_mov_b32 s{sBARI}, 1
v_mov_b32 v{vIDX}, 0xdddddddd
""")
if OPT["stop"] == 1:
    e("s_waitcnt vmcnt(0)"); bar(); e("s_branch L_END")
lab("L_ATT")
e(f"""
v_add_u32 v{vK}, {R0}, v{vL16}
v_lshrrev_b32 v16, 5, v0
v_lshlrev_b32 v16, 8, v16
v_bfe_u32 v17, v0, 2, 2
v_lshl_add_u32 v16, v17, 5, v16
v_and_b32 v17, 3, v0
v_lshl_add_u32 v16, v17, 3, v16
v_add_u32 v16, {R0+32768}, v16
v_and_b32 v17, 15, v0
v_lshlrev_b32 v17, 3, v17
v_add_u32 v17, {ONES+128}, v17
v_bfe_u32 v18, v0, 4, 1
v_xor_b32 v{vMask}, 1, v18
v_cmp_eq_u32 vcc, 0, v18
ds_read_b128 {vr(KB,4)}, v{vK}
ds_read_b128 {vr(KB+4,4)}, v{vK} offset:1024
v_cndmask_b32 v{vV}, v17, v16, vcc
""")
def v_reads(buf, tig):
    return [f"ds_read_b64_tr_b16 {vr(VB+8*buf+2*q,2)}, v{vV} offset:{1024*tig + 512*(q>>1) + 128*(q&1)}" for q in range(4)]
for r in v_reads(0, 0): e(r)
for i in range(16): e(f"v_mov_b32 v{OA+i}, 0")
for i in range(16): e(f"v_mov_b32 v{OB+i}, 0")
for i in range(4): e(f"v_mov_b32 v{VB+12+i}, 0")
e(f"""
s_mov_b32 s{sI}, 0
s_waitcnt lgkmcnt(0)
s_cmp_eq_u32 s{sPASS}, 0
s_cbranch_scc0 L_ATT_HAVEC
v_mfma_f32_32x32x16_bf16 {vr(SX,16)}, {vr(KB,4)}, {vr(vQ,4)}, 0
v_mfma_f32_32x32x16_bf16 {vr(SY,16)}, {vr(KB,4)}, {vr(vQ+4,4)}, 0
s_nop 10
""")
def maxtree(dst, src, init=None):
    if init is None:
        e(f"v_max3_f32 v{dst}, v{src}, v{src+1}, v{src+2}")
        k = 3
    else:
        k = 0
    while k < 16:
        if k + 1 < 16: e(f"v_max3_f32 v{dst}, v{dst}, v{src+k}, v{src+k+1}"); k += 2
        else: e(f"v_max_f32 v{dst}, v{dst}, v{src+k}"); k += 1
maxtree(16, SX); maxtree(17, SY)
lab("L_ATT_SETC")
e(f"""
v_mov_b32 v18, v16
v_mov_b32 v19, v17
s_nop 1
v_permlane32_swap_b32 v16, v18
v_permlane32_swap_b32 v17, v19
v_max_f32 v16, v16, v18
v_max_f32 v17, v17, v19
v_sub_f32 v{CA}, 0, v16
v_sub_f32 v{CB}, 0, v17
""")
for i in range(1, 16): e(f"v_mov_b32 v{CA+i}, v{CA}\nv_mov_b32 v{CB+i}, v{CB}")
e(f"s_cmp_eq_u32 s{sPASS}, 0\ns_cbranch_scc0 L_ATT")
lab("L_ATT_HAVEC")
e(f"s_nop 1\nv_mfma_f32_32x32x16_bf16 {vr(SX,16)}, {vr(KB,4)}, {vr(vQ,4)}, {vr(CA,16)}\ns_nop 11")
N1, N2, N3 = OPT.get("n1", 2), OPT.get("n2", 3), OPT.get("n3", 5)
def half_step(cur, oth, Ocur, Ooth, Qoth, Coth, Kf, V0, V1prev, ins):
    i = 0
    def ex(n):
        nonlocal i
        for _ in range(n):
            e(f"v_exp_f32 v{cur+i}, v{cur+i}")
            for x in ins.get(i, []): e(x)
            i += 1
    ex(N1)
    e(f"v_smfmac_f32_32x32x32_bf16 {vr(Ooth,16)}, {vr(V1prev,4)}, {vr(oth+8,8)}, v{vIDX}")
    for x in ins.get("m0", []): e(x)
    ex(N2)
    e(f"v_mfma_f32_32x32x16_bf16 {vr(oth,16)}, {vr(Kf,4)}, {vr(Qoth,4)}, {vr(Coth,16)}")
    for x in ins.get("m1", []): e(x)
    ex(N3)
    e(f"v_smfmac_f32_32x32x32_bf16 {vr(Ocur,16)}, {vr(V0,4)}, {vr(cur,8)}, v{vIDX}")
    for x in ins.get("m2", []): e(x)
    ex(16 - i)
e(".p2align 6")
lab("L_ATT_LOOP")
e(f"s_cmp_eq_u32 s{sI}, s{sBARI}\ns_cbranch_scc1 L_ATT_BAR")
lab("L_ATT_BARRET")
if OPT["prof"] == 2:
    e(f"s_memtime s[{t5}:{t5+1}]\ns_add_u32 m0, s{sI}, 32\ns_waitcnt lgkmcnt(0)\nv_writelane_b32 v15, s{t5}, m0")
e(f"s_movk_i32 s{sINC}, 0x1000\ns_cmp_eq_u32 s{sI}, 7\ns_cmov_b32 s{sINC}, {hx(R1 - R0 - 28672)}")
for t in range(4):
    p = t & 1
    v = v_reads(p ^ 1, (t + 1) & 3)
    fa = {"m0": v[0:2], "m1": ["s_waitcnt lgkmcnt(3)"], "m2": v[2:4]}
    if t == 2: fa[13] = [f"v_mad_i32_i24 v{vV}, v{vMask}, s{sINC}, v{vV}"]
    half_step(SX, SY, OA, OB, vQ+4, CB, KB + 4*p, VB + 8*p, VB + 8*(p^1) + 4, fa)
    fb = {"m0": ["s_waitcnt lgkmcnt(4)"], "m1": [f"ds_read_b128 {vr(KB+4*p,4)}, v{vK} offset:{1024*((t+2)&3)}"]}
    if t == 1: fb[13] = [f"v_add_u32 v{vK}, s{sINC}, v{vK}"]
    if t == 3: fb["m2"] = [f"s_add_u32 s{sI}, s{sI}, 1", f"s_cmp_lt_u32 s{sI}, 16"]
    half_step(SY, SX, OB, OA, vQ, CA, KB + 4*(p^1), VB + 8*p, VB + 8*p + 4, fb)
e("s_cbranch_scc1 L_ATT_LOOP")
e(f"s_nop 1\nv_smfmac_f32_32x32x32_bf16 {vr(OB,16)}, {vr(VB+12,4)}, {vr(SY+8,8)}, v{vIDX}")
stamp("A", "loop_end")
e(f"""
s_lshl_b32 s{t0}, s{sQB}, 3
s_lshl_b32 s{t1}, s{sW}, 1
s_add_u32 s{t0}, s{t0}, s{t1}
s_lshl_b32 s{t0}, s{t0}, 15
s_lshl_b32 s{t1}, s{sHD}, 10
s_add_u32 s{t0}, s{t0}, s{t1}
s_add_u32 s{t0}, s{t0}, {WS_O}
s_mov_b32 s{t1}, 0x7f000000
s_nop 3
v_add_f32 v16, abs(v{OA}), v{OA+8}
v_rcp_f32 v18, v{OA+8}
""")
for i in range(1, 8): e(f"v_add_f32 v16, abs(v{OA+i}), v16")
e(f"v_mul_f32 v18, v18, v{vGa}\nv_add_f32 v17, abs(v{OB}), v{OB+8}\nv_rcp_f32 v19, v{OB+8}")
for i in range(1, 8): e(f"v_add_f32 v17, abs(v{OB+i}), v17")
e(f"""
v_mul_f32 v19, v19, v{vGb}
v_add_f32 v16, v16, v17
v_cmp_ngt_f32 vcc, s{t1}, v16
s_cbranch_vccnz L_ATT_FB
""")
lab("L_ATT_OK")
for i in range(8): e(f"v_mul_f32 v{OA+i}, v{OA+i}, v18")
for i in range(4): e(f"v_cvt_pk_bf16_f32 v{20+i}, v{OA+2*i}, v{OA+2*i+1}")
e(f"buffer_store_dwordx4 v[20:23], v{vL16}, {sr(dWS,4)}, s{t0} offen {SC}")
for i in range(8): e(f"v_mul_f32 v{OB+i}, v{OB+i}, v19")
for i in range(4): e(f"v_cvt_pk_bf16_f32 v{24+i}, v{OB+2*i}, v{OB+2*i+1}")
e(f"""
s_add_u32 s{t0}, s{t0}, 32768
buffer_store_dwordx4 v[24:27], v{vL16}, {sr(dWS,4)}, s{t0} offen {SC}
s_lshl_b32 s{t0}, s{sQB}, 2
s_add_u32 s{t0}, s{t0}, s{sW}
s_lshl_b32 s{t0}, s{t0}, 5
s_add_u32 s{t0}, s{t0}, s{sHD}
s_lshl_b32 s{t0}, s{t0}, 6
s_add_u32 s{t0}, s{t0}, {WS_F3}
v_mov_b32 v16, s{sEP}
v_mov_b32 v17, 0
s_waitcnt vmcnt(0)
buffer_store_dword v16, v17, {sr(dWS,4)}, s{t0} offen sc1
""")
stamp("A", "end")
dump_stamps("A")
e("s_endpgm")
lab("L_ATT_BAR")
e("s_waitcnt vmcnt(0)"); bar(); e("s_branch L_ATT_BARRET")
lab("L_ATT_FB")
e(f"""
s_cmp_eq_u32 s{sPASS}, 0
s_cbranch_scc0 L_ATT_OK
s_mov_b32 s{sPASS}, 1
s_mov_b32 s{sBARI}, -1
s_mov_b32 s{sI}, 0
v_add_u32 v{vK}, {R0}, v{vL16}
v_mov_b32 v16, 0xff800000
v_mov_b32 v17, 0xff800000
""")
lab("L_FB_LOOP")
e(f"""
ds_read_b128 {vr(KB,4)}, v{vK}
s_movk_i32 s{sINC}, 0x400
s_cmp_eq_u32 s{sI}, 31
s_cmov_b32 s{sINC}, {hx(R1 - R0 - 31744)}
s_waitcnt lgkmcnt(0)
v_mfma_f32_32x32x16_bf16 {vr(SX,16)}, {vr(KB,4)}, {vr(vQ,4)}, 0
v_mfma_f32_32x32x16_bf16 {vr(SY,16)}, {vr(KB,4)}, {vr(vQ+4,4)}, 0
v_add_u32 v{vK}, s{sINC}, v{vK}
s_nop 10
""")
maxtree(16, SX, init=True); maxtree(17, SY, init=True)
e(f"""
s_add_u32 s{sI}, s{sI}, 1
s_cmp_lt_u32 s{sI}, 64
s_cbranch_scc1 L_FB_LOOP
s_branch L_ATT_SETC
""")

lab("L_G")
x_addr_calc()
e(f"""
v_lshrrev_b32 v1, 5, v0
v_lshlrev_b32 v1, 9, v1
v_bfe_u32 v2, v0, 2, 2
v_lshl_add_u32 v1, v2, 6, v1
v_bfe_u32 v2, v0, 4, 1
v_lshl_add_u32 v1, v2, 5, v1
v_and_b32 v2, 3, v0
v_lshl_add_u32 v1, v2, 3, v1
v_add_u32 v{vTr}, 16384, v1
v_add_u32 v{vTr+1}, {16384+57344}, v1
v_add_u32 v{vTr+2}, {16384+114688}, v1
""")
trw1_calc()
pair_cols()
e(f"""
v_and_b32 v1, 31, v0
v_lshlrev_b32 v1, 5, v1
v_lshrrev_b32 v2, 5, v0
v_lshl_add_u32 v{vLV}, v2, 4, v1
v_and_b32 v1, 3, v0
v_bfe_u32 v2, v0, 2, 1
v_lshl_or_b32 v1, v2, 3, v1
v_bfe_u32 v2, v0, 3, 1
v_lshl_or_b32 v1, v2, 2, v1
v_lshlrev_b32 v1, 2, v1
v_add_u32 v{vCsA}, {CS}, v1
v_and_b32 v1, 15, v0
v_lshrrev_b32 v2, 4, v0
v_xor_b32 v3, v1, v2
v_and_b32 v3, 1, v3
v_lshrrev_b32 v16, 2, v1
v_or_b32 v3, v3, v16
v_lshrrev_b32 v16, 1, v2
v_cmp_gt_u32 vcc, 2, v1
v_mov_b32 v17, 2
s_nop 0
v_cndmask_b32 v16, v16, v17, vcc
v_cmp_eq_u32 vcc, 0, v3
v_mov_b32 v17, 3
s_nop 0
v_cndmask_b32 v16, v17, v16, vcc
v_lshlrev_b32 v16, 4, v16
v_add_u32 v{vTb}, {TBL}, v16
s_waitcnt lgkmcnt(0)
""")
for i in range(12): e(f"v_mov_b32 v{SACC+i}, 0")
stamp_entry("G")
srd(dWS, kWS, WS_SIZE)
e(f"""
s_cmp_eq_u32 s{sW}, 1
s_cbranch_scc1 L_G_T1
s_cmp_eq_u32 s{sW}, 2
s_cbranch_scc1 L_G_T2
s_cmp_eq_u32 s{sW}, 3
s_cbranch_scc1 L_G_T3
""")
srd(dTMP, kGW, 1024)
e(f"""
buffer_load_dwordx4 v[16:19], v{vL16}, {sr(dTMP,4)}, 0 offen
v_lshrrev_b32 v1, 1, v0
s_lshl_b32 s{t0}, s{sROT}, 2
v_subrev_u32 v1, s{t0}, v1
v_and_b32 v1, 31, v1
v_lshlrev_b32 v1, 6, v1
v_and_b32 v2, 1, v0
v_lshl_add_u32 v1, v2, 4, v1
v_add_u32 v1, {TBL}, v1
v_and_b32 v2, 31, v0
v_lshlrev_b32 v2, 6, v2
v_lshrrev_b32 v3, 5, v0
v_lshl_add_u32 v2, v3, 4, v2
v_add_u32 v2, {TBL+32}, v2
v_subrev_u32 v3, 1, v3
v_and_b32 v20, 0x3f803f80, v3
v_mov_b32 v21, v20
v_mov_b32 v22, v20
v_mov_b32 v23, v20
ds_write_b128 v2, v[20:23]
s_cmp_eq_u32 s{sB}, 0
s_cbranch_scc0 L_G_T0B
v_mov_b32 v24, {WS_EP}
buffer_load_dword v25, v24, {sr(dWS,4)}, 0 offen sc1
s_waitcnt vmcnt(0)
ds_write_b128 v1, v[16:19]
v_add_u32 v25, 1, v25
v_max_u32 v25, 1, v25
""")
srd(dTMP, kDBG, 256)
e(f"""
v_mov_b32 v26, 0
buffer_store_dword v25, v26, {sr(dTMP,4)}, 0 offen sc1
buffer_store_dword v25, v24, {sr(dWS,4)}, 0 offen sc1
s_branch L_G_TDONE
""")
lab("L_G_T0B")
e("s_waitcnt vmcnt(0)\nds_write_b128 v1, v[16:19]\ns_branch L_G_TDONE")
lab("L_G_T1")
srd(dTMP, kB1, 3584)
e(f"""
v_and_b32 v1, 31, v0
v_lshlrev_b32 v1, 2, v1
s_lshl_b32 s{t0}, s{sC1}, 6
s_lshl_b32 s{t1}, s{sC2}, 6
v_add_u32 v2, s{t0}, v1
v_add_u32 v3, s{t1}, v1
v_cmp_gt_u32 vcc, 32, v0
v_lshlrev_b32 v1, 3, v0
v_mov_b32 v18, 0
v_cndmask_b32 v2, v3, v2, vcc
buffer_load_dword v16, v2, {sr(dTMP,4)}, 0 offen
v_mov_b32 v19, 0
v_add_u32 v1, {CS}, v1
ds_write_b64 v1, v[18:19]
s_waitcnt vmcnt(0)
v_and_b32 v17, 0xffff0000, v16
v_lshlrev_b32 v16, 16, v16
ds_write_b64 v1, v[16:17] offset:{B1T-CS}
s_branch L_G_TDONE
""")
lab("L_G_T2")
srd(dTMP, kB2, 1024)
e(f"""
v_and_b32 v1, 31, v0
v_lshlrev_b32 v2, 2, v1
s_lshl_b32 s{t0}, s{sCT}, 7
buffer_load_dword v16, v2, {sr(dTMP,4)}, s{t0} offen
v_lshlrev_b32 v1, 3, v1
v_add_u32 v1, {B2T}, v1
s_waitcnt vmcnt(0)
v_and_b32 v17, 0xffff0000, v16
v_lshlrev_b32 v16, 16, v16
ds_write_b64 v1, v[16:17]
s_branch L_G_TDONE
""")
lab("L_G_T3")
if OPT["codepf"]:
    e(f"""
s_getpc_b64 s[{dTMP}:{dTMP+1}]
s_and_b32 s{dTMP}, s{dTMP}, 0xffffff00
s_and_b32 s{dTMP+1}, s{dTMP+1}, 0xffff
s_mov_b32 s{dTMP+2}, CODE_SPAN
s_mov_b32 s{dTMP+3}, 0x20000
s_lshr_b32 s{t0}, s{sB}, 3
s_lshl_b32 s{t0}, s{t0}, 10
buffer_load_dwordx4 v[96:99], v{vL16}, {sr(dTMP,4)}, s{t0} offen
""")
e(f"""
v_add_u32 v1, {ONES}, v{vL16}
v_mov_b32 v16, 0x3f803f80
v_mov_b32 v17, v16
v_mov_b32 v18, v16
v_mov_b32 v19, v16
""")
for j in range(4): e(f"ds_write_b128 v1, v[16:19] offset:{1024*j}")
lab("L_G_TDONE")
srd(dTMP, kDBG, 256)
srd(dW2, kW2, 1792*1024); srd(dWO, kWO, 512*1024); srd(dOUT, kOUT, 2048*1024)
e("s_waitcnt lgkmcnt(0)")
bar()
stamp("G", "bar0")
def g_reads(sg):
    u, s = sg >> 2, sg & 3
    a, base = tr_addr(u)
    out = []
    for i in range(3):
        for q in range(2):
            out.append(f"ds_read_b64_tr_b16 {vr(WF+12*(sg%3)+4*i+2*q,2)}, v{a} offset:{base + s*3072 + i*1024 + q*256}")
    out.append(f"ds_read_b128 {vr(XR+4*sg,4)}, v{vXa+s} offset:{x_base(u)[1]}")
    return out
vEp = 125
def tb_read(sg): return f"ds_read_b128 {vr(TF+4*(sg&1),4)}, v{vTb} offset:{64*sg}"
for r in g_reads(0) + [tb_read(0)] + g_reads(1): e(r)
for sg in range(32):
    nx = sg + 2
    if nx % 4 == 0:
        if sg == 26:
            e(f"s_waitcnt vmcnt(0)\nv_readfirstlane_b32 s{sEP}, v{vEp}\ns_nop 0\ns_cmp_eq_u32 s{sEP}, 0\ns_cbranch_scc1 L_G_EPSPIN")
            lab("L_G_EPOK")
            e(f"v_mov_b32 v1, {EPO}\nds_write_b32 v1, v{vEp}")
        e("s_waitcnt lgkmcnt(0)"); bar()
        if nx < 32:
            d, _ = x_base(nx >> 2)
            if d:
                for s in range(4): e(f"v_add_u32 v{vXa+s}, {hx(d)}, v{vXa+s}")
    else:
        e(f"s_waitcnt lgkmcnt({7 if sg < 31 else 0})")
    if sg == 13:
        e(f"s_nop 0\nv_mov_b32 v1, 0\nbuffer_load_dword v{vEp}, v1, {sr(dTMP,4)}, 0 offen sc1")
    rd = ([tb_read(sg+1)] if sg < 31 else []) + (g_reads(nx) if nx < 32 else [])
    x = XR + 4*sg
    extra = [f"v_mfma_f32_4x4x4_16b_bf16 {vr(SSA,4)}, {vr(x,2)}, {vr(x,2)}, {vr(SSA,4)}",
             f"v_mfma_f32_16x16x32_bf16 {vr(SACC,4)}, {vr(TF+4*(sg&1),4)}, {vr(x,4)}, {vr(SACC,4)}",
             f"v_mfma_f32_4x4x4_16b_bf16 {vr(SSB,4)}, {vr(x+2,2)}, {vr(x+2,2)}, {vr(SSB,4)}"]
    for i in range(3):
        c = vr(ACC+16*i, 16) if sg else "0"
        e(f"v_mfma_f32_32x32x16_bf16 {vr(ACC+16*i,16)}, {vr(WF+12*(sg%3)+4*i,4)}, {vr(x,4)}, {c}")
        for r in rd[(0,3,6)[i]:(3,6,8)[i]]: e(r)
        e(extra[i])
stamp("G", "ph1_end")
for i in range(3):
    e(f"""
s_mul_i32 s{t0}, s{sCG}, 3
s_add_u32 s{t0}, s{t0}, {i}
s_lshr_b32 s{t1}, s{t0}, 4
s_and_b32 s{t0}, s{t0}, 15
s_lshl_b32 s{t0}, s{t0}, 17
s_lshl_b32 s{t2}, s{t1}, 21
s_add_u32 s{t0}, s{t0}, s{t2}
s_lshl_b32 s{t2}, s{sTT}, 2
s_add_u32 s{t2}, s{t2}, s{sW}
s_lshl_b32 s{t2}, s{t2}, 10
s_add_u32 s{t0}, s{t0}, s{t2}
s_add_u32 s{t2}, s{t0}, 65536
s_cmp_eq_u32 s{t1}, 2
s_cselect_b64 s[{t5}:{t5+1}], -1, 0
v_cndmask_b32 v{1+i}, v{vL16}, v{vLV}, s[{t5}:{t5+1}]
s_cmp_eq_u32 s{t1}, 0
s_cbranch_scc0 L_G_NOS{i}
s_mov_b32 s{t1}, {hx(f2u(QSCALE))}
""")
    for j in range(16): e(f"v_mul_f32 v{ACC+16*i+j}, s{t1}, v{ACC+16*i+j}")
    lab(f"L_G_NOS{i}")
    for j in range(8): e(f"v_cvt_pk_bf16_f32 v{WF+8*i+j}, v{ACC+16*i+2*j}, v{ACC+16*i+2*j+1}")
    e(f"buffer_store_dwordx4 {vr(WF+8*i,4)}, v{1+i}, {sr(dWS,4)}, s{t0} offen {SC}")
    e(f"buffer_store_dwordx4 {vr(WF+8*i+4,4)}, v{1+i}, {sr(dWS,4)}, s{t2} offen {SC}")
e(f"""
v_add_f32 v{SSA}, v{SSA}, v{SSB}
v_add_f32 v{SSA+1}, v{SSA+1}, v{SSB+1}
v_add_f32 v{SSA+2}, v{SSA+2}, v{SSB+2}
v_add_f32 v{SSA+3}, v{SSA+3}, v{SSB+3}
v_and_b32 v16, 1, v0
v_and_b32 v17, 2, v0
v_cmp_eq_u32 vcc, 0, v16
v_cmp_eq_u32 s[{t5}:{t5+1}], 0, v17
v_permlane16_swap_b32 v{SACC}, v{SACC+1}
v_permlane16_swap_b32 v{SACC+2}, v{SACC+3}
v_cndmask_b32 v{SSA}, v{SSA+1}, v{SSA}, vcc
v_cndmask_b32 v{SSA+2}, v{SSA+3}, v{SSA+2}, vcc
v_mov_b32 v{SACC+1}, v{SACC}
v_mov_b32 v{SACC+3}, v{SACC+2}
v_cndmask_b32 v{SSA}, v{SSA+2}, v{SSA}, s[{t5}:{t5+1}]
v_mov_b32 v{SSB}, v{SSA}
v_permlane32_swap_b32 v{SACC}, v{SACC+1}
v_permlane32_swap_b32 v{SACC+2}, v{SACC+3}
v_permlane32_swap_b32 v{SSA}, v{SSB}
v_mul_f32 v{SACC}, {hx(f2u(1/512))}, v{SACC}
v_mul_f32 v{SACC+2}, {hx(f2u(-LOG2E))}, v{SACC+2}
v_add_f32 v{SSA}, v{SSA}, v{SSB}
v_exp_f32 v{SACC+2}, v{SACC+2}
v_mul_f32 v{SSA}, {hx(f2u(1/512))}, v{SSA}
v_fma_f32 v{SSA}, -v{SACC}, v{SACC}, v{SSA}
v_add_f32 v{SACC+2}, 1.0, v{SACC+2}
v_max_f32 v{SSA}, 0, v{SSA}
v_add_f32 v{SSA}, {hx(f2u(1e-5))}, v{SSA}
v_rcp_f32 v{SACC+2}, v{SACC+2}
v_rsq_f32 v{vRstd}, v{SSA}
v_and_b32 v16, 31, v0
v_lshlrev_b32 v17, 3, v16
v_mul_f32 v{vAm}, -v{SACC}, v{vRstd}
s_lshl_b32 s{t0}, s{sW}, 8
s_add_u32 s{t0}, s{t0}, {STAT}
v_add_u32 v17, s{t0}, v17
v_lshlrev_b32 v16, 2, v16
ds_write_b64 v17, v[{vRstd}:{vAm}]
s_lshl_b32 s{t0}, s{sCG}, 13
s_lshl_b32 s{t1}, s{sTT}, 9
s_add_u32 s{t0}, s{t0}, s{t1}
s_lshl_b32 s{t1}, s{sW}, 7
s_add_u32 s{t0}, s{t0}, s{t1}
s_add_u32 s{t0}, s{t0}, {WS_G}
buffer_store_dword v{SACC+2}, v16, {sr(dWS,4)}, s{t0} offen {SC}
""")
bar()
stamp("G", "bar9")
def flag_store(base, lbl):
    e(f"""
s_cmp_eq_u32 s{sW}, 0
s_cbranch_scc0 {lbl}
s_lshl_b32 s{t0}, s{sTT}, 4
s_add_u32 s{t0}, s{t0}, s{sCG}
s_lshl_b32 s{t0}, s{t0}, 6
s_add_u32 s{t0}, s{t0}, {base}
v_mov_b32 v1, s{sEP}
v_mov_b32 v2, 0
buffer_store_dword v1, v2, {sr(dWS,4)}, s{t0} offen sc1
""")
    lab(lbl)
e(f"""
s_mov_b32 s{sP0}, {P1}
s_mov_b32 s{sP1}, 0
s_call_b64 {sr(sRET,2)}, L_CSP
""")
stamp("G", "csp1")
e("s_waitcnt vmcnt(0) lgkmcnt(0)")
stamp("G", "stwait")
bar()
flag_store(WS_F1, "L_G_NF1")
stamp("G", "bar10")
e(f"v_add_u32 v{vTile}, {P1}, v{vTrW1}\ns_call_b64 {sr(sRET,2)}, L_TILE")
stamp("G", "tile_a")
bar()
stamp("G", "bar11")
e(f"s_mov_b32 s{sP0}, 0\ns_call_b64 {sr(sRET,2)}, L_EPI")
stamp("G", "epi_a")
h_store(f"s_mov_b32 s{t0}, s{sC1}")
e(f"""
s_mov_b32 s{sP0}, {P2}
s_mov_b32 s{sP1}, 256
s_call_b64 {sr(sRET,2)}, L_CSP
s_waitcnt lgkmcnt(0)
""")
stamp("G", "csp2")
bar()
stamp("G", "bar12")
e(f"""
s_cmp_eq_u32 s{sFG}, 0
s_cbranch_scc1 L_G_NOC1
v_add_u32 v{vTile}, {P2}, v{vTrW1}
s_call_b64 {sr(sRET,2)}, L_TILE
""")
lab("L_G_NOC1")
bar()
stamp("G", "bar13")
e(f"s_mov_b32 s{sP0}, {R1}\ns_mov_b32 s{sP1}, 32\ns_call_b64 {sr(sRET,2)}, L_DMAKV")
e(f"""
s_cmp_eq_u32 s{sFG}, 0
s_cbranch_scc1 L_G_NOC2
s_setprio 2
s_mov_b32 s{sP0}, 256
s_call_b64 {sr(sRET,2)}, L_EPI
""")
h_store(f"s_mov_b32 s{t0}, s{sC2}")
lab("L_G_NOC2")
e("s_setprio 0\ns_waitcnt vmcnt(0)")
bar()
flag_store(WS_F2, "L_G_NF2")
if OPT["stop"] == 1:
    e("s_branch L_END")
GA, GW, GH = 16, 80, 96
if OPT["prof"]: e("v_mov_b32 v15, v124"); stamp_reg["G"] = 15
vD0, vD1, vA0, vA1, vH0, vH1, vOm0, vOm1 = 4, 5, 6, 7, 8, 9, 10, 11
sKD, sKH, sRG, sE = 74, 75, 76, 77
e(f"""
s_lshr_b32 s{t0}, s{sT64}, 1
s_lshl_b32 s{t0}, s{t0}, 10
s_add_u32 s{t0}, s{t0}, {WS_F2}
v_and_b32 v1, 15, v0
v_lshlrev_b32 v1, 6, v1
v_add_u32 v3, s{t0}, v1
v_lshrrev_b32 v1, 3, v0
v_bfe_u32 v2, v0, 4, 1
v_lshlrev_b32 v2, 2, v2
v_xor_b32 v2, v2, v0
v_and_b32 v2, 7, v2
v_lshlrev_b32 v2, 4, v2
v_lshl_add_u32 v{vD0}, v1, 10, v2
v_add_u32 v{vD1}, 7168, v{vD0}
v_lshrrev_b32 v1, 5, v0
v_lshlrev_b32 v1, 10, v1
v_bfe_u32 v2, v0, 2, 2
v_lshl_add_u32 v1, v2, 7, v1
v_bfe_u32 v2, v0, 4, 1
v_lshl_add_u32 v1, v2, 5, v1
v_and_b32 v2, 1, v0
v_lshl_add_u32 v1, v2, 4, v1
v_bfe_u32 v2, v0, 1, 1
v_lshl_add_u32 v1, v2, 3, v1
v_bfe_u32 v2, v0, 3, 1
v_lshlrev_b32 v2, 6, v2
v_xor_b32 v1, v1, v2
s_lshl_b32 s{sRG}, s{sW}, 12
s_add_u32 s{sRG}, s{sRG}, {RING}
s_and_b32 s{t0}, s{sW}, 1
s_lshl_b32 s{t0}, s{t0}, 6
v_xor_b32 v1, s{t0}, v1
v_add_u32 v{vA0}, s{sRG}, v1
v_xor_b32 v{vA1}, 64, v{vA0}
s_lshr_b32 s{t0}, s{sW}, 1
s_mul_i32 s{t1}, s{t0}, 114688
s_sub_u32 s{t2}, 114688, s{t1}
v_add_u32 v{vH0}, s{t1}, v{vL16}
v_add_u32 v{vH1}, s{t2}, v{vL16}
s_mul_i32 s{sKD}, s{sW}, {28*16384}
s_lshl_b32 s{t1}, s{sCT}, 7
s_add_u32 s{sKD}, s{sKD}, s{t1}
s_mul_i32 s{sKH}, s{sT64}, 229376
s_mul_i32 s{t1}, s{sW}, {28*1024}
s_add_u32 s{sKH}, s{sKH}, s{t1}
s_add_u32 s{sKH}, s{sKH}, {WS_H}
v_and_b32 v1, 31, v0
v_lshlrev_b32 v1, 2, v1
s_lshl_b32 s{t0}, s{t0}, 7
v_add_u32 v2, s{t0}, v1
v_xor_b32 v1, 0x80, v2
""")
stamp("G", "pre_p2")
poll("L_P2", 3)
stamp("G", "poll2")
e(f"""
s_lshl_b32 s{t0}, s{sT64}, 8
s_add_u32 s{t0}, s{t0}, {WS_G}
buffer_load_dword v{vOm0}, v2, {sr(dWS,4)}, s{t0} offen {SC}
buffer_load_dword v{vOm1}, v1, {sr(dWS,4)}, s{t0} offen {SC}
""")
def g2_issue(slot, hbuf, ekd, ekh):
    e(f"""
s_add_u32 m0, s{sRG}, {2048*slot}
s_nop 0
buffer_load_dwordx4 v{vD0}, {sr(dW2,4)}, s{ekd} offen lds
buffer_load_dwordx4 v{vD1}, {sr(dW2,4)}, s{ekd} offen offset:1024 lds
buffer_load_dwordx4 {vr(GH+8*hbuf,4)}, v{vH0}, {sr(dWS,4)}, s{ekh} offen {SC}
buffer_load_dwordx4 {vr(GH+8*hbuf+4,4)}, v{vH1}, {sr(dWS,4)}, s{ekh} offen {SC}
""")
def g2_tr(dst, slot):
    return [f"ds_read_b64_tr_b16 {vr(dst+4*a+2*q,2)}, v{vA0+a} offset:{2048*slot + 512*q}" for a in range(2) for q in range(2)]
g2_issue(0, 0, sKD, sKH)
e(f"s_add_u32 s{t0}, s{sKD}, 16384\ns_add_u32 s{t1}, s{sKH}, 1024")
g2_issue(1, 1, t0, t1)
e("s_waitcnt vmcnt(6)")
for r in g2_tr(GW, 0): e(r)
e(f"s_add_u32 s{t0}, s{sKD}, 32768\ns_add_u32 s{t1}, s{sKH}, 2048\ns_waitcnt lgkmcnt(0)")
g2_issue(0, 2, t0, t1)
for i in range(64): e(f"v_mov_b32 v{GA+i}, 0")
e(f"s_mov_b32 s{sE}, 3")
lab("L_G2")
for k in range(4):
    e("s_waitcnt vmcnt(6)")
    rd = g2_tr(GW + 8*((k+1)&1), (k+1)&1)
    for i in range(4):
        a, b = i & 1, i >> 1
        e(f"v_mfma_f32_32x32x16_bf16 {vr(GA+16*i,16)}, {vr(GW+8*(k&1)+4*a,4)}, {vr(GH+8*k+4*b,4)}, {vr(GA+16*i,16)}")
        if i == 0:
            for r in rd: e(r)
    e(f"""
s_min_u32 s{t2}, s{sE}, 27
s_lshl_b32 s{t0}, s{t2}, 14
s_add_u32 s{t0}, s{t0}, s{sKD}
s_lshl_b32 s{t1}, s{t2}, 10
s_add_u32 s{t1}, s{t1}, s{sKH}
s_add_u32 s{sE}, s{sE}, 1
s_waitcnt lgkmcnt(0)
""")
    g2_issue((k+1)&1, (k+3)&3, t0, t1)
e(f"s_cmp_lt_u32 s{sE}, 31\ns_cbranch_scc1 L_G2")
stamp("G", "g2_end")
WOR, OR = 128, 192
e(f"""
s_waitcnt vmcnt(0)
v_sub_f32 v{vOm0}, 1.0, v{vOm0}
v_sub_f32 v{vOm1}, 1.0, v{vOm1}
s_lshl_b32 s{sKD}, s{sW}, 17
s_lshl_b32 s{t1}, s{sCT}, 7
s_add_u32 s{sKD}, s{sKD}, s{t1}
""")
def wo_issue(j):
    e(f"""
s_add_u32 m0, s{sRG}, {2048*(j&1)}
s_add_u32 s{t0}, s{sKD}, {16384*j}
buffer_load_dwordx4 v{vD0}, {sr(dWO,4)}, s{t0} offen lds
buffer_load_dwordx4 v{vD1}, {sr(dWO,4)}, s{t0} offen offset:1024 lds
""")
wo_issue(0); wo_issue(1)
for i in range(64): e(f"v_mul_f32 v{GA+i}, v{GA+i}, v{vOm0 if i < 32 else vOm1}")
for j in range(8):
    e(f"s_waitcnt vmcnt({2 if j < 7 else 0})")
    for r in g2_tr(WOR + 8*j, j & 1): e(r)
    if j + 2 < 8:
        e("s_waitcnt lgkmcnt(0)"); wo_issue(j + 2)
B2R = 80
e(f"""
s_and_b32 s{t0}, s{sW}, 1
s_lshl_b32 s{t0}, s{t0}, 7
s_add_u32 s{t0}, s{t0}, {B2T}
v_and_b32 v1, 32, v0
v_add_u32 v1, s{t0}, v1
ds_read_b128 {vr(B2R,4)}, v1
ds_read_b128 {vr(B2R+4,4)}, v1 offset:16
ds_read_b128 {vr(B2R+8,4)}, v1 offset:64
ds_read_b128 {vr(B2R+12,4)}, v1 offset:80
s_lshl_b32 s{t0}, s{sT64}, 5
s_lshl_b32 s{t1}, s{sW}, 3
s_add_u32 s{t0}, s{t0}, s{t1}
s_lshl_b32 s{t0}, s{t0}, 6
s_add_u32 s{t0}, s{t0}, {WS_F3}
v_and_b32 v1, 7, v0
v_lshlrev_b32 v1, 6, v1
v_add_u32 v3, s{t0}, v1
s_lshr_b32 s{t0}, s{sW}, 1
s_lshl_b32 s{t0}, s{t0}, 15
v_add_u32 v{vH0}, s{t0}, v{vL16}
v_xor_b32 v{vH1}, 0x8000, v{vH0}
s_lshl_b32 s{sKH}, s{sT64}, 16
s_lshl_b32 s{t1}, s{sW}, 13
s_add_u32 s{sKH}, s{sKH}, s{t1}
s_add_u32 s{sKH}, s{sKH}, {WS_O}
s_add_u32 s{sE}, s{sKH}, 4096
""")
for i in range(1, 4):
    e(f"s_xor_b32 s{t0}, s{sW}, {i}\ns_mul_i32 s{t0}, s{t0}, 12288\ns_add_u32 s{t0}, s{t0}, {4096*(i-1)}\nv_add_u32 v{95+i}, s{t0}, v{vL16}")
e(f"""
s_mul_i32 s{t0}, s{sW}, 12288
v_add_u32 v99, s{t0}, v{vL16}
v_and_b32 v1, 31, v0
v_lshlrev_b32 v1, 10, v1
v_lshrrev_b32 v2, 5, v0
v_lshl_add_u32 v12, v2, 4, v1
s_lshl_b32 s{sKD}, s{sT64}, 16
s_lshr_b32 s{t0}, s{sW}, 1
s_lshl_b32 s{t0}, s{t0}, 15
s_add_u32 s{sKD}, s{sKD}, s{t0}
s_lshl_b32 s{t0}, s{sCT}, 7
s_add_u32 s{sKD}, s{sKD}, s{t0}
s_and_b32 s{t0}, s{sW}, 1
s_lshl_b32 s{t0}, s{t0}, 6
s_add_u32 s{sKD}, s{sKD}, s{t0}
s_waitcnt lgkmcnt(0)
""")
stamp("G", "pre_p3")
poll("L_P3", 3)
stamp("G", "poll3")
for j in range(8):
    for b in range(2):
        e(f"buffer_load_dwordx4 {vr(OR+8*j+4*b,4)}, v{vH0+b}, {sr(dWS,4)}, s{sKH if j < 4 else sE} offen offset:{1024*(j&3)} {SC}")
for j in range(8):
    e(f"s_waitcnt vmcnt({14-2*j})")
    for i in range(4):
        a, b = i & 1, i >> 1
        e(f"v_mfma_f32_32x32x16_bf16 {vr(GA+16*i,16)}, {vr(WOR+8*j+4*a,4)}, {vr(OR+8*j+4*b,4)}, {vr(GA+16*i,16)}")
bar()
e("s_nop 8")
for i in range(1, 4):
    for q in range(4): e(f"ds_write_b128 v{95+i}, {vr(GA+16*i+4*q,4)} offset:{1024*q}")
e("s_waitcnt lgkmcnt(0)")
bar()
for i in range(12): e(f"ds_read_b128 {vr(128+4*i,4)}, v99 offset:{1024*i}")
for i in range(16): e(f"v_fmac_f32 v{GA+i}, v{B2R+i}, v{vOm0}")
for s in range(3):
    e(f"s_waitcnt lgkmcnt({8-4*s})")
    for i in range(16): e(f"v_add_f32 v{GA+i}, v{GA+i}, v{128+16*s+i}")
for i in range(8): e(f"v_cvt_pk_bf16_f32 v{32+i}, v{GA+2*i}, v{GA+2*i+1}")
e(f"buffer_store_dwordx4 v[32:35], v12, {sr(dOUT,4)}, s{sKD} offen")
e(f"buffer_store_dwordx4 v[36:39], v12, {sr(dOUT,4)}, s{sKD} offen offset:32")
if OPT.get("delay"):
    e(f"s_mov_b32 s{t0}, {OPT['delay']}")
    lab("L_DELAY")
    e(f"s_nop 15\ns_nop 15\ns_nop 15\ns_nop 15\ns_sub_u32 s{t0}, s{t0}, 1\ns_cmp_lg_u32 s{t0}, 0\ns_cbranch_scc1 L_DELAY")
stamp("G", "end")
dump_stamps("G")
lab("L_END")
e("s_endpgm")
lab("L_G_EPSPIN")
e(f"s_mov_b32 s{sTO}, 100000\nv_mov_b32 v1, 0")
lab("L_G_EPSPIN2")
e(f"""
buffer_load_dword v{vEp}, v1, {sr(dTMP,4)}, 0 offen sc1
s_waitcnt vmcnt(0)
v_readfirstlane_b32 s{sEP}, v{vEp}
s_sub_u32 s{sTO}, s{sTO}, 1
s_cbranch_scc1 L_G_EPOK
s_cmp_eq_u32 s{sEP}, 0
s_cbranch_scc1 L_G_EPSPIN2
s_branch L_G_EPOK
""")
lab("L_DMAPAIR")
e(f"""
s_lshl_b32 s{t0}, s{sP2}, 2
s_add_u32 s{t0}, s{t0}, s{sW}
s_lshl_b32 s{t1}, s{t0}, 10
s_add_u32 s{sP0}, s{sP0}, s{t1}
s_lshl_b32 s{t1}, s{sROT}, 2
s_add_u32 s{t0}, s{t0}, s{t1}
""")
for k in range(4):
    e(f"""
s_and_b32 s{t0}, s{t0}, 31
s_mul_i32 s{t1}, s{t0}, 57344
s_add_u32 m0, s{sP0}, {4096*k}
s_add_u32 s{t1}, s{t1}, s{sP1}
buffer_load_dwordx4 v{vW1}, {sr(dW1,4)}, s{t1} offen lds
s_add_u32 m0, s{sP0}, {4096*k + 32704}
s_add_u32 s{t0}, s{t0}, 4
buffer_load_dwordx4 v{vW1}, {sr(dW1,4)}, s{t1} offen offset:64 lds
""")
e(f"s_setpc_b64 {sr(sRET,2)}")
lab("L_DMAKV")
e(f"""
s_lshl_b32 s{t0}, s{sW}, 11
s_add_u32 s{sP0}, s{sP0}, s{t0}
s_lshl_b32 s{t1}, s{sHD}, 16
s_add_u32 s{t1}, s{t1}, s{t0}
s_lshl_b32 s{t0}, s{sQB}, 3
s_add_u32 s{t0}, s{t0}, s{sP1}
""")
for g in range(4):
    e(f"s_and_b32 s{t0}, s{t0}, 63\ns_lshl_b32 s{t2}, s{t0}, 10\ns_add_u32 s{t2}, s{t2}, s{t1}\ns_add_u32 s{t0}, s{t0}, 8")
    for kv in range(2):
        e(f"s_add_u32 m0, s{sP0}, {32768*kv + 8192*g}\ns_add_u32 s{t3}, s{t2}, {WS_V if kv else WS_K}")
        for j in range(2):
            e(f"buffer_load_dwordx4 v{vL16}, {sr(dWS,4)}, s{t3} offen offset:{1024*j} {SC} lds")
e(f"s_setpc_b64 {sr(sRET,2)}")
def t_reads(s): return [f"ds_read_b64_tr_b16 {vr(WF+4*(s%3)+2*q,2)}, v{vTile} offset:{1024*s + 256*q}" for q in range(2)]
def tile_routine(name, stream):
    lab(name)
    e("s_setprio 2")
    for r in t_reads(0) + t_reads(1): e(r)
    for s in range(32):
        e(f"s_waitcnt lgkmcnt({2 if s < 31 else 0})")
        e(f"v_mfma_f32_32x32x16_bf16 {vr(ACC,16)}, {vr(WF+4*(s%3),4)}, {vr(XR+4*s,4)}, {vr(ACC,16) if s else 0}")
        pre, post = [], []
        if stream == "W" and s % 2 == 0:
            ee, b = s >> 2, (s >> 1) & 1
            pre = [f"s_add_u32 m0, s{sGM}, {4096*ee + 32704*b}"]
            if b == 0: pre += [f"s_mul_i32 s{sGC}, s{sGS2}, 57344", f"s_add_u32 s{sGC}, s{sGC}, s{sGST}"]
            post = [f"buffer_load_dwordx4 v{vW1}, {sr(dW1,4)}, s{sGC} offen offset:{64*b} lds"]
            if b: post += [f"s_add_u32 s{sGS2}, s{sGS2}, 4", f"s_and_b32 s{sGS2}, s{sGS2}, 31"]
        if stream == "K" and s % 2 == 0:
            i = s >> 1
            g, kv, j = i >> 2, (i >> 1) & 1, i & 1
            if j == 0:
                pre = [f"s_add_u32 m0, s{sGM}, {32768*kv + 8192*g}"]
                if kv == 0: pre += [f"s_and_b32 s{sGS2}, s{sGS2}, 63", f"s_lshl_b32 s{t1}, s{sGS2}, 10", f"s_add_u32 s{t1}, s{t1}, s{sGC}", f"s_add_u32 s{sGS2}, s{sGS2}, 8"]
                pre += [f"s_add_u32 s{t0}, s{t1}, {WS_V if kv else WS_K}"]
            post = [f"buffer_load_dwordx4 v{vL16}, {sr(dWS,4)}, s{t0} offen offset:{1024*j} {SC} lds"]
        for r in pre: e(r)
        if s + 2 < 32:
            for r in t_reads(s + 2): e(r)
        elif pre and post: e("s_nop 0")
        for r in post: e(r)
    e(f"s_setprio 0\ns_setpc_b64 {sr(sRET,2)}")
tile_routine("L_TILE", None); tile_routine("L_TILEW", "W"); tile_routine("L_TILEK", "K")
lab("L_EPI")
e(f"v_add_u32 v3, s{sP0}, v{vT}")
QO = (0, 16, 64, 80)
for q in range(4):
    e(f"ds_read_b128 {vr(32+4*q,4)}, v3 offset:{QO[q]}\nds_read_b128 {vr(48+4*q,4)}, v3 offset:{QO[q]+B1T-CS}")
e(f"s_mov_b32 s{t0}, {hx(f2u(GC2))}\ns_nop 0")
for q in range(2):
    e(f"s_waitcnt lgkmcnt({4-4*q})")
    R = range(8*q, 8*q + 8)
    for i in R: e(f"v_fma_f32 v{48+i}, v{32+i}, v{vAm}, v{48+i}")
    for i in R: e(f"v_fma_f32 v{ACC+i}, v{ACC+i}, v{vRstd}, v{48+i}")
    for i in R: e(f"v_mul_f32 v{32+i}, v{ACC+i}, v{ACC+i}")
    for i in R: e(f"v_fma_f32 v{32+i}, v{32+i}, s{t0}, v{vC1}")
    for i in R: e(f"v_mul_f32 v{32+i}, v{32+i}, v{ACC+i}")
    for i in R: e(f"v_exp_f32 v{32+i}, v{32+i}")
    for i in R: e(f"v_add_f32 v{32+i}, 1.0, v{32+i}")
    for i in R: e(f"v_rcp_f32 v{32+i}, v{32+i}")
    for i in R: e(f"v_mul_f32 v{ACC+i}, v{ACC+i}, v{32+i}")
    for i in range(4): e(f"v_cvt_pk_bf16_f32 v{PK+4*q+i}, v{ACC+8*q+2*i}, v{ACC+8*q+2*i+1}")
e(f"s_setpc_b64 {sr(sRET,2)}")
lab("L_CSP")
e(f"""
s_lshl_b32 s{t0}, s{sW}, 13
s_add_u32 s{t0}, s{t0}, s{sP0}
v_add_u32 v3, s{t0}, v{vTrW1}
""")
def cs_reads(g):
    return [f"ds_read_b64_tr_b16 {vr(32+16*(g&1)+2*q,2)}, v3 offset:{32768*(g>>1) + 4096*(g&1) + 1024*(q>>1) + 256*(q&1)}" for q in range(8)]
for r in cs_reads(0): e(r)
e(f"""
v_and_b32 v76, 15, v0
v_bfe_u32 v77, v0, 4, 1
v_cmp_eq_u32 vcc, v76, v77
v_mov_b32 v77, 0x3f803f80
v_mov_b32 v76, 0
v_cndmask_b32 v76, v76, v77, vcc
v_mov_b32 v77, v76
v_mov_b32 v78, v76
v_mov_b32 v79, v76
""")
for g in range(4):
    e("s_waitcnt lgkmcnt(0)")
    if OPT["prof"] == 4: e(f"s_memtime s[{t5}:{t5+1}]\ns_add_u32 m0, s{sP1}, {32+g}\ns_waitcnt lgkmcnt(0)\nv_writelane_b32 v124, s{t5}, m0")
    if g < 3:
        for r in cs_reads(g + 1): e(r)
    d = 80 + 4*(g >> 1)
    for i in range(4): e(f"v_mfma_f32_16x16x32_bf16 {vr(d,4)}, v[76:79], {vr(32+16*(g&1)+4*i,4)}, {vr(d,4) if (g&1 or i) else 0}")
e(f"""
v_add_u32 v3, s{sP1}, v{vCsA}
s_nop 6
{f's_memtime s[{t5}:{t5+1}]' if OPT["prof"] == 4 else ''}
{f's_add_u32 m0, s{sP1}, 36' if OPT["prof"] == 4 else ''}
{f's_waitcnt lgkmcnt(0)' if OPT["prof"] == 4 else ''}
{f'v_writelane_b32 v124, s{t5}, m0' if OPT["prof"] == 4 else ''}
s_mov_b64 exec, 0xffff
ds_add_f32 v3, v80
ds_add_f32 v3, v81 offset:64
ds_add_f32 v3, v84 offset:128
ds_add_f32 v3, v85 offset:192
s_mov_b64 exec, -1
s_setpc_b64 {sr(sRET,2)}
""")
lab("L_CODE_END")
e(f".set CODE_SPAN, L_CODE_END - {KN}")
e(f"""
.section .rodata,"a"
.p2align 6
.amdhsa_kernel {KN}
  .amdhsa_next_free_vgpr 256
  .amdhsa_next_free_sgpr 102
  .amdhsa_accum_offset 256
  .amdhsa_group_segment_fixed_size 0
  .amdhsa_kernarg_size 96
  .amdhsa_user_sgpr_count 2
  .amdhsa_user_sgpr_kernarg_segment_ptr 1
  .amdhsa_system_sgpr_workgroup_id_x 1
  .amdhsa_float_denorm_mode_32 3
.end_amdhsa_kernel
""")
errs = hazard.check(L)
for x in errs: print("HAZARD", x, file=sys.stderr)
out = sys.argv[1] if len(sys.argv) > 1 else "cdna_kernels/" + NAME + ".s"
open(out, "w").write("\n".join(L) + "\n")
import json; json.dump(stamp_names, open(out + ".json", "w"))
print("wrote", out, len(L), "lines;", len(errs), "hazards")
```
